```python
import torch

def _softmax(x, axis=-1):
    return torch.softmax(x, dim=axis)
def _gelu(x):
    return torch.nn.functional.gelu(x, approximate="tanh")
def _silu(x):
    return torch.nn.functional.silu(x)
def _sigmoid(x):
    return torch.sigmoid(x)
def _layernorm(x, axis=-1, eps=1e-5):
    m = x.mean(dim=axis, keepdim=True)
    v = x.var(dim=axis, keepdim=True, unbiased=False)
    return (x - m) / torch.sqrt(v + eps)
def _scatter_add(tgt, idx, src, axis=0):
    return tgt.clone().index_add_(axis, idx, src)
def _segment_sum(src, seg, n):
    out = torch.zeros((n,) + src.shape[1:], dtype=src.dtype)
    return out.index_add_(0, seg, src)
def _pad(x, pw):
    flat = tuple(v for pair in reversed(pw) for v in pair)
    return torch.nn.functional.pad(x, flat)

kernel_name = 'gated_mix__softmax_full_mha__dense_activation_squared_relu__prompt'

def setup_inputs():

    _w = (lambda a: (lambda t: t.to(torch.bfloat16) if t.is_floating_point() else t)(torch.as_tensor(a)))
    def _A_setup():
        B, S, D = 1, 2048, 512
        return {
            "x": _w((lambda *s: torch.randn(*s, dtype=torch.bfloat16) * 0.05)(B, S, D)),
            "wqkv": _w((lambda *s: torch.randn(*s, dtype=torch.bfloat16) * 0.8)(D, 3 * D)),
            "wo": _w((lambda *s: torch.randn(*s, dtype=torch.bfloat16) * 0.1)(D, D)),
        }
    _A_in = _A_setup()

    def _B_setup():
        B, S, D, F = 1, 2048, 512, 1376
        return {
            "x": _w((lambda *s: torch.randn(*s, dtype=torch.bfloat16) * 0.05)(B, S, D)),
            "w1": _w((lambda *s: torch.randn(*s, dtype=torch.bfloat16) * 0.1)(D, F)),
            "b1": _w((lambda *s: torch.randn(*s, dtype=torch.bfloat16) * 0.1)(F)),
            "w2": _w((lambda *s: torch.randn(*s, dtype=torch.bfloat16) * 0.1)(F, D)),
            "b2": _w((lambda *s: torch.randn(*s, dtype=torch.bfloat16) * 0.05)(D)),
        }
    _B_in = _B_setup()

    return {
        "A_x": _A_in["x"],
        "A_wqkv": _A_in["wqkv"],
        "A_wo": _A_in["wo"],
        "B_x": _B_in["x"],
        "B_w1": _B_in["w1"],
        "B_b1": _B_in["b1"],
        "B_w2": _B_in["w2"],
        "B_b2": _B_in["b2"],
        "gate_w": _w((lambda *s: torch.randn(*s, dtype=torch.bfloat16) * 0.05)(512) * 16.0),
    }

def reference(A_x, A_wqkv, A_wo, B_x, B_w1, B_b1, B_w2, B_b2, gate_w):
    def _A_ref(x, wqkv, wo):
        B, S, D = x.shape
        H = 32; Dh = D // H
        qkv = (lambda x, *d: x.permute(*d))((x @ wqkv).reshape(B, S, 3, H, Dh), 2, 0, 3, 1, 4)
        q, k, v = qkv[0], qkv[1], qkv[2]
        scale = Dh ** -0.5
        scores = torch.einsum("bhqd,bhkd->bhqk", q, k) * scale
        p = _softmax(scores, axis=-1)
        o = torch.einsum("bhqk,bhkd->bhqd", p, v)
        return (lambda x, *d: x.permute(*d))(o, 0, 2, 1, 3).reshape(B, S, D) @ wo

    def _B_ref(x, w1, b1, w2, b2):
        h = torch.einsum("bsd,df->bsf", x, w1) + b1
        zero = torch.zeros_like(h)
        r = torch.where(h > zero, h, zero)
        h = r * r
        out = torch.einsum("bsf,fd->bsd", h, w2) + b2
        return out

    x = A_x
    g = _sigmoid((x * gate_w).sum(-1, keepdims=True))
    a = _A_ref(x, A_wqkv, A_wo)
    b = _B_ref(x, B_w1, B_b1, B_w2, B_b2)
    return g * a + (1 - g) * b
```

```python
import re
class Asm:
    def __init__(self):
        self.lines=[]
        self.uid=0
    def __call__(self, s):
        for l in s.split("\n"):
            l=l.strip()
            if l: self.lines.append(l)
    def label(self, n): self.lines.append(n+":")
    def newlabel(self, p):
        self.uid+=1
        return f"L_{p}_{self.uid}"
    def text(self):
        out=[]
        for l in self.lines:
            out.append(l if l.endswith(":") or l.startswith(".") else "    "+l)
        return "\n".join(out)+"\n"
def vr(a,n=1): return f"v{a}" if n==1 else f"v[{a}:{a+n-1}]"
def sr(a,n=1): return f"s{a}" if n==1 else f"s[{a}:{a+n-1}]"

TRANS=('v_exp_f32','v_rcp_f32','v_log_f32','v_rsq_f32','v_sqrt_f32')
def regs(tok):
    tok=tok.strip()
    neg=tok.lstrip('-')
    m=re.fullmatch(r'(?:abs\()?([vs])(\d+)\)?',neg)
    if m: return [(m.group(1),int(m.group(2)))]
    m=re.fullmatch(r'([vs])\[(\d+):(\d+)\]',neg)
    if m: return [(m.group(1),i) for i in range(int(m.group(2)),int(m.group(3))+1)]
    if neg=='vcc': return [('s','vcc')]
    if neg=='exec': return [('s','exec')]
    if neg=='m0': return [('s','m0')]
    return []
def parse(l):
    l=l.split(';')[0].strip()
    op,_,rest=l.partition(' ')
    toks=[t.strip() for t in rest.split(',')] if rest else []
    if toks:
        toks[-1]=toks[-1].split(' ')[0]
    d=dict(op=op,w=[],r=[],kind='other',toks=toks,line=l)
    if op.startswith('v_mfma') :
        d['kind']='mfma'; d['w']=regs(toks[0]); d['a']=regs(toks[1])+regs(toks[2]); d['c']=regs(toks[3]); d['r']=d['a']+d['c']
        d['pass']=8 if '32x32' in op else 4
    elif op.startswith('v_smfmac'):
        d['kind']='mfma'; d['w']=regs(toks[0]); d['a']=regs(toks[1])+regs(toks[2])+regs(toks[3]); d['c']=regs(toks[0]); d['r']=d['a']+d['c']
        d['pass']=8 if '32x32' in op else 4
    elif op.startswith('v_cmp'):
        d['kind']='valu'; d['w']=regs(toks[0]); d['r']=sum((regs(t) for t in toks[1:]),[])
    elif op.startswith('v_permlane'):
        d['kind']='valu'; d['w']=regs(toks[0])+regs(toks[1]); d['r']=d['w']; d['perm']=1
    elif op.startswith('v_readfirstlane') or op.startswith('v_readlane'):
        d['kind']='valu'; d['w']=regs(toks[0]); d['r']=regs(toks[1]); d['rl']=1
    elif op.startswith('v_'):
        d['kind']='valu'; d['w']=regs(toks[0]); d['r']=sum((regs(t) for t in toks[1:]),[])
        if op.startswith('v_fmac') or 'dot2c' in op: d['r']+=d['w']
        if op in TRANS: d['trans']=1
    elif op.startswith('buffer_load') or op.startswith('global_load'):
        d['kind']='vmem'
        if ' lds' in l: d['r']=sum((regs(t) for t in toks),[])+[('s','m0')]; d['dma']=1
        else: d['w']=regs(toks[0]); d['r']=sum((regs(t) for t in toks[1:]),[])
    elif op.startswith('buffer_store') or op.startswith('buffer_atomic'):
        d['kind']='vmem'; d['r']=sum((regs(t) for t in toks),[]); d['sdata']=regs(toks[0]) if 'x4' in op or 'x3' in op else []
    elif op.startswith('ds_read'):
        d['kind']='ds'; d['w']=regs(toks[0]); d['r']=regs(toks[1])
    elif op.startswith('ds_'):
        d['kind']='ds'; d['r']=sum((regs(t) for t in toks),[])
    elif op.startswith('s_nop'):
        d['kind']='nop'; d['n']=int(toks[0])+1
    elif op.startswith('s_'):
        d['kind']='salu'
        if toks and not op.startswith('s_cmp') and not op.startswith('s_cbranch') and not op.startswith('s_waitcnt') and not op.startswith('s_branch'):
            d['w']=regs(toks[0]); d['r']=sum((regs(t) for t in toks[1:]),[])
        elif op.startswith('s_cmp'): d['r']=sum((regs(t) for t in toks),[])
    return d
def need(p,c):
    n=0
    pw=set(p['w']); cr=set(c['r']); cw=set(c['w'])
    pv={x for x in pw if x[0]=='v'}; ps={x for x in pw if x[0]=='s'}
    if p['kind']=='valu':
        if c['kind']=='mfma' and pv&cr: n=max(n,2)
        if c.get('perm') and pv&cr: n=max(n,2)
        if c.get('rl') and pv&cr: n=max(n,1)
        if p.get('trans') and c['kind']=='valu' and not c.get('trans') and pv&cr: n=max(n,1)
        if p.get('trans') and c['kind'] in('ds','vmem') and pv&cr: n=max(n,1)
        if ps&cr and c['kind']=='vmem': n=max(n,5)
        if ps&cr and c['kind'] in('valu',): n=max(n,2)
        if ps&cr and c['kind']=='salu': n=max(n,1)
        if ('s','vcc') in ps and c['op'].startswith('s_cbranch_vcc'): n=max(n,1)
        if ('s','vcc') in ps and c['op'].startswith('v_cndmask'): n=max(n,2)
    if p['kind']=='salu':
        if ('s','m0') in ps and c.get('dma'): n=max(n,1)
    if p['kind']=='mfma':
        big={8:12,4:8}[p['pass']]
        if c['kind']=='mfma':
            if pv&set(c['a']): n=max(n,big)
            if pv&set(c['c']) and set(c['c'])!=pv: n=max(n,big-2)
            if pv&set(c['c']) and c['pass']!=p['pass']: n=max(n,big-2)
            if pv&cw and not (pv&set(c['c'])): n=max(n,0)
        elif c['kind'] in('valu','ds','vmem'):
            if pv&(cr|cw): n=max(n,big)
        if c['kind']=='valu' and set(p['c'])&cw: n=max(n,{8:7,4:3}[p['pass']])
    if p['kind']=='vmem' and p.get('sdata'):
        if set(p['sdata'])&cw: n=max(n,2)
    return n
def check(lines):
    ins=[];labels={}
    for l in lines:
        s=l.split(';')[0].strip()
        if not s or s.startswith('.'): continue
        if s.endswith(':'): labels[s[:-1]]=len(ins); continue
        ins.append(parse(s))
    probs=set()
    W=20
    def walk(i,start,dist,seen):
        p=ins[start]
        stack=[(i,dist)]
        best={}
        while stack:
            j,d=stack.pop()
            if j>=len(ins) or d>=W: continue
            if best.get(j,99)<=d: continue
            best[j]=d
            c=ins[j]
            nd=need(p,c)
            if nd>d: probs.add(f"hazard: need {nd} have {d}: [{p['line']}] -> [{c['line']}]")
            step=c.get('n',1) if c['kind']=='nop' else 1
            op=c['op']
            if op=='s_endpgm': continue
            if op=='s_branch': stack.append((labels[c['toks'][0]],d+step)); continue
            if op.startswith('s_cbranch'): stack.append((labels[c['toks'][0]],d+step))
            stack.append((j+1,d+step))
    for i,p in enumerate(ins):
        if p['kind'] in('valu','salu','mfma','vmem'):
            op=p['op']
            if op=='s_endpgm': continue
            if op=='s_branch' or op.startswith('s_cbranch'): continue
            walk(i+1,i,0,None)
    return sorted(probs)
```

```python
import sys, os
sys.path.insert(0, os.path.dirname(os.path.abspath(__file__)))
from asmlib import Asm, vr, sr, check
NAME = "gated_mix__softmax_full_mha__dense_activation_squared_relu__prompt"
OPT = dict(prof=0, prio=1, forcefb=0, bound=0)
for a_ in sys.argv[2:]:
    k, v = a_.split("="); OPT[k] = int(v)

X, WQKV, W1, W2, WO, B1, B2, GW, OUT, DBG, WS = 4, 8, 12, 16, 20, 24, 28, 32, 36, 40, 44
sW, sHP, sRB, sST, sTT = 48, 49, 50, 51, 52
sA, sB, sC, sD, sE, sF = 53, 54, 55, 56, 57, 58
sLD = 59
sVM = 60
sCNT = 62
sPR = 64
KVB, HB, OB, PRB = 1 << 20, 8 << 20, 16 << 20, 32 << 20
XS = [0, 16384, 32768]
WSL = 49152
W1A = 86016
WOL = 55296
RING = 120832
QST = 153600
GWL = 161792
B1L = 162816
GL = 163072
FLG = 163584
FP = [0, 16384, 32768, RING]
ACC, WF, vXA, vWA, vG0, vG1, vG2, vL, vT0, vT1 = 128, 144, 160, 161, 162, 163, 164, 165, 166, 167
QSC = 0x3eb8aa3b

a = Asm()
nstamp = [0]
def stamp(i):
    if OPT['prof']:
        a(f"s_memtime {sr(sPR+2*i,2)}")
def srd(s): return sr(s, 4)
def spin(L, D, slp):
    if OPT['bound']:
        a(f"s_add_u32 s63, s63, 1\ns_cmp_gt_u32 s63, 100000\ns_cbranch_scc1 {D}")
    a(f"s_sleep {slp}\ns_branch {L}")

def prologue():
    a(f"s_cmp_ge_u32 s2, 256\ns_cbranch_scc1 L_exit")
    for s, off in ((X,0),(WQKV,8),(GW,64),(B1,40),(WS,88),(W1,32),(DBG,80),(WO,16),(W2,48),(B2,56),(OUT,72)):
        a(f"s_load_dwordx2 {sr(s,2)}, s[0:1], {off}")
    stamp(0)
    a(f"v_lshrrev_b32 v1, 6, v0\nv_and_b32 v{vL}, 63, v0")
    for s, sz in ((X,2097152),(WQKV,1572864),(W1,1409024),(W2,1409024),(WO,524288),(B1,2752),(B2,1024),(GW,1024),(OUT,2097152),(DBG,256),(WS,268435456)):
        a(f"s_mov_b32 s{s+2}, {sz}\ns_mov_b32 s{s+3}, 0x20000")
    a(f"v_readfirstlane_b32 s{sW}, v1")
    a(f"""s_and_b32 s{sA}, s2, 3
s_lshl_b32 s{sA}, s{sA}, 2
s_bfe_u32 s{sB}, s2, 0x20003
s_add_u32 s{sRB}, s{sA}, s{sB}
s_bfe_u32 s{sA}, s2, 0x10002
s_lshl_b32 s{sA}, s{sA}, 3
s_lshr_b32 s{sB}, s2, 5
s_add_u32 s{sHP}, s{sA}, s{sB}
s_lshl_b32 s{sA}, s{sRB}, 1
s_add_u32 s{sA}, s{sA}, s{sHP}
s_and_b32 s{sST}, s{sA}, 7
s_and_b32 s{sTT}, s{sW}, 3
s_mov_b32 s{sVM}, 0xffff
s_mov_b32 s{sVM+1}, 0xffff""")
    if OPT['bound']: a("s_mov_b32 s63, 0")
    a(f"""v_and_b32 v1, 31, v{vL}
v_lshrrev_b32 v2, 5, v{vL}
v_bfe_u32 v3, v{vL}, 1, 3
v_xor_b32 v3, v3, v2
v_lshlrev_b32 v3, 4, v3
v_lshl_add_u32 v3, v1, 7, v3
s_lshl_b32 s{sA}, s{sTT}, 12
v_add_u32 v{vXA}, s{sA}, v3""")
    a(f"""v_bfe_u32 v3, v{vL}, 2, 2
v_lshl_add_u32 v3, v2, 3, v3
v_mul_u32_u24 v3, 192, v3
v_bfe_u32 v4, v{vL}, 4, 1
v_lshl_add_u32 v3, v4, 5, v3
v_and_b32 v4, 3, v{vL}
v_lshl_add_u32 v{vWA}, v4, 3, v3""")
    a(f"s_cmp_ge_u32 s{sW}, 8\ns_cbranch_scc1 L_roleQ")

def chunk_off(dst, i, mul):
    a(f"s_add_u32 s{dst}, s{sST}, {i}\ns_and_b32 s{dst}, s{dst}, 7\ns_mul_i32 s{dst}, s{dst}, {mul}")
def load_x(i):
    chunk_off(sA, i, 128)
    a(f"s_add_u32 m0, s{sLD}, {XS[i%3]}\ns_nop 0\nbuffer_load_dwordx4 v{vG0}, {srd(X)}, s{sA} offen lds")
    a(f"s_add_u32 m0, s{sLD}, {XS[i%3]+1024}\ns_nop 0\nbuffer_load_dwordx4 v{vG1}, {srd(X)}, s{sA} offen lds")
def load_w(i, rs, rowb, lds):
    chunk_off(sA, i, 64*rowb)
    for n in range(3):
        a(f"s_add_u32 m0, s{sLD}, {lds+1024*n}\ns_nop 0\nbuffer_load_dwordx4 v{vG0+n}, {srd(rs)}, s{sA} offen lds")
def w_addr(w1):
    for n in range(3):
        g = vG0+n
        a(f"""s_mul_i32 s{sA}, s{sTT}, 192
s_add_u32 s{sA}, s{sA}, {64*n}
v_add_u32 v{vT0}, s{sA}, v{vL}
v_mul_u32_u24 v{vT1}, 43691, v{vT0}
v_lshrrev_b32 v{vT1}, 19, v{vT1}
v_mul_u32_u24 v{g}, 12, v{vT1}
v_sub_u32 v{vT0}, v{vT0}, v{g}""")
        if not w1:
            a(f"""v_mul_u32_u24 v{vT1}, 3072, v{vT1}
v_lshrrev_b32 v{g}, 2, v{vT0}
v_lshl_add_u32 v{vT1}, v{g}, 10, v{vT1}
v_and_b32 v{vT0}, 3, v{vT0}
v_lshl_add_u32 v{vT1}, v{vT0}, 4, v{vT1}
s_lshl_b32 s{sA}, s{sHP}, 6
v_add_u32 v{g}, s{sA}, v{vT1}""")
        else:
            a(f"""s_mul_i32 s{sA}, s{sHP}, 192
v_lshl_add_u32 v{vT0}, v{vT0}, 4, s{sA}
v_min_u32 v{vT0}, 2736, v{vT0}
v_mul_u32_u24 v{vT1}, 2752, v{vT1}
v_add_u32 v{g}, v{vT0}, v{vT1}""")

def qkv_step(i, role):
    wo = 12288*(i % 3)
    for s in range(4):
        a(f"ds_read_b128 {vr(16*i+4*s,4)}, v{vXA} offset:{XS[i%3]}")
        a(f"v_xor_b32 v{vXA}, {32 if s%2==0 else 96}, v{vXA}")
        a(f"ds_read_b64_tr_b16 {vr(WF+4*s,2)}, v{vWA} offset:{wo+16*s*192}")
        a(f"ds_read_b64_tr_b16 {vr(WF+4*s+2,2)}, v{vWA} offset:{wo+(16*s+4)*192}")
    for s in range(4):
        a(f"s_waitcnt lgkmcnt({9-3*s})")
        c = "0" if (i == 0 and s == 0) else vr(ACC,16)
        A, B = (vr(16*i+4*s,4), vr(WF+4*s,4)) if role == 'V' else (vr(WF+4*s,4), vr(16*i+4*s,4))
        a(f"v_mfma_f32_32x32x16_bf16 {vr(ACC,16)}, {A}, {B}, {c}")
def pack(dst, src, n):
    for j in range(n):
        a(f"v_cvt_pk_bf16_f32 v{dst+j}, v{src+2*j}, v{src+2*j+1}")
def b1_init(ct_s):
    a(f"""v_lshrrev_b32 v{vT0}, 5, v{vL}
v_lshlrev_b32 v{vT0}, 3, v{vT0}
s_lshl_b32 s{sA}, s{ct_s}, 6
s_add_u32 s{sA}, s{sA}, {B1L}
v_add_u32 v{vT0}, s{sA}, v{vT0}""")
    for q in range(4):
        a(f"ds_read_b64 {vr(WF+8+2*q,2)}, v{vT0} offset:{16*q}")
def b1_fin():
    a("s_waitcnt lgkmcnt(0)")
    for q in range(8):
        a(f"v_lshlrev_b32 v{ACC+2*q}, 16, v{WF+8+q}\nv_and_b32 v{ACC+2*q+1}, 0xffff0000, v{WF+8+q}")
def ffn1_pair(d):
    base = 24576*(d % 2)
    def rd(k):
        c, s = k//4, k % 4
        o = base + 12288*c + 16*s*192
        r = WF+4*(k % 4)
        a(f"ds_read_b64_tr_b16 {vr(r,2)}, v{vWA} offset:{o}\nds_read_b64_tr_b16 {vr(r+2,2)}, v{vWA} offset:{o+768}")
    for k in range(4): rd(k)
    for k in range(8):
        a(f"s_waitcnt lgkmcnt({6 if k<5 else 2*(7-k)})")
        a(f"v_mfma_f32_32x32x16_bf16 {vr(ACC,16)}, {vr(WF+4*(k%4),4)}, {vr(32*d+4*k,4)}, {vr(ACC,16)}")
        if k < 4: rd(k+4)
def ffn1_epi(tmp):
    for j in range(16): a(f"v_max_f32 v{ACC+j}, 0, v{ACC+j}")
    for j in range(8): a(f"v_pk_mul_f32 {vr(ACC+2*j,2)}, {vr(ACC+2*j,2)}, {vr(ACC+2*j,2)}")
    pack(tmp, ACC, 8)
def h_store(tmp, ct_s, av):
    L = a.newlabel("hs")
    a(f"""s_mul_i32 s{sA}, s{sHP}, 3
s_add_u32 s{sA}, s{sA}, s{ct_s}
s_cmp_ge_u32 s{sA}, 43
s_cbranch_scc1 {L}
s_lshl_b32 s{sA}, s{sA}, 1
s_lshl_b32 s{sB}, s{sRB}, 2
s_add_u32 s{sB}, s{sB}, s{sTT}
s_mul_i32 s{sB}, s{sB}, 86
s_add_u32 s{sA}, s{sA}, s{sB}
s_lshl_b32 s{sA}, s{sA}, 10
s_add_u32 s{sA}, s{sA}, {HB}
v_lshlrev_b32 v{av}, 4, v{vL}
buffer_store_dwordx4 {vr(tmp,4)}, v{av}, {srd(WS)}, s{sA} offen sc1
buffer_store_dwordx4 {vr(tmp+4,4)}, v{av}, {srd(WS)}, s{sA} offen offset:1024 sc1""")
    a.label(L)
def poll(cnt_s, val_v, adr_v, target=16):
    L = a.newlabel("poll"); D = a.newlabel("polld")
    a(f"v_mov_b32 v{adr_v}, 0\ns_mov_b64 exec, 1")
    a.label(L)
    a(f"""buffer_load_dword v{val_v}, v{adr_v}, {srd(WS)}, s{cnt_s} offen sc1
s_waitcnt vmcnt(0)
v_cmp_eq_u32 vcc, {target}, v{val_v}
s_nop 0
s_cbranch_vccnz {D}""")
    spin(L, D, 1)
    a.label(D)
    a("s_mov_b64 exec, -1")
def signal(cnt_s, v0_, v1_):
    a(f"""v_mov_b32 v{v0_}, 0
v_mov_b32 v{v1_}, 1
s_mov_b64 exec, 1
buffer_atomic_add v{v1_}, v{v0_}, {srd(WS)}, s{cnt_s} offen sc1
s_mov_b64 exec, -1""")

def role_kv():
    a(f"""v_lshrrev_b32 v1, 3, v{vL}
s_lshl_b32 s{sA}, s{sRB}, 7
s_lshl_b32 s{sB}, s{sW}, 4
s_add_u32 s{sA}, s{sA}, s{sB}
v_add_u32 v1, s{sA}, v1
v_lshlrev_b32 v1, 10, v1
v_and_b32 v2, 7, v{vL}
v_lshrrev_b32 v3, 4, v{vL}
v_xor_b32 v2, v2, v3
v_lshl_add_u32 v{vG0}, v2, 4, v1
v_xor_b32 v{vG1}, 64, v{vG0}
v_add_u32 v{vG1}, 8192, v{vG1}
s_lshl_b32 s{sLD}, s{sW}, 11
s_lshr_b32 s{sC}, s{sW}, 2
s_lshl_b32 s{sA}, s{sC}, 6
s_add_u32 s{sA}, s{sA}, {WSL+64}
v_add_u32 v{vWA}, s{sA}, v{vWA}
s_waitcnt lgkmcnt(0)""")
    load_x(0); load_x(1)
    a(f"s_cmp_ge_u32 s{sW}, 4\ns_cbranch_scc1 L_roleV")
    for role in "KV":
        if role == 'V': a.label("L_roleV")
        for i in range(8):
            a(f"s_waitcnt vmcnt({2 if i<7 else 0})\ns_barrier")
            if i == 0: stamp(1)
            if i < 6: load_x(i+2)
            qkv_step(i, role)
        stamp(2)
        b1_init(sC)
        a(f"""s_lshl_b32 s{sA}, s{sHP}, 18
s_lshl_b32 s{sB}, s{sRB}, 2
s_add_u32 s{sB}, s{sB}, s{sTT}
s_lshl_b32 s{sB}, s{sB}, 11
s_add_u32 s{sA}, s{sA}, s{sB}
s_add_u32 s{sA}, s{sA}, {KVB}""")
        if role == 'K':
            a(f"""v_and_b32 v{vG0}, 0x33, v{vL}
v_bfe_u32 v{vG1}, v{vL}, 2, 1
v_lshl_add_u32 v{vG0}, v{vG1}, 3, v{vG0}
v_bfe_u32 v{vG1}, v{vL}, 3, 1
v_lshl_add_u32 v{vG0}, v{vG1}, 2, v{vG0}
v_lshlrev_b32 v{vG0}, 4, v{vG0}
s_add_u32 s{sB}, s{sA}, 131072""")
            pack(WF, ACC, 8)
            a(f"buffer_store_dwordx4 {vr(WF,4)}, v{vG0}, {srd(WS)}, s{sA} offen sc1")
            a(f"buffer_store_dwordx4 {vr(WF+4,4)}, v{vG0}, {srd(WS)}, s{sB} offen sc1")
        else:
            a(f"""v_and_b32 v{vG0}, 15, v{vL}
v_lshlrev_b32 v{vG0}, 4, v{vG0}
v_lshrrev_b32 v{vG1}, 5, v{vL}
v_lshl_add_u32 v{vG0}, v{vG1}, 8, v{vG0}
v_bfe_u32 v{vG1}, v{vL}, 4, 1
v_lshl_add_u32 v{vG0}, v{vG1}, 17, v{vG0}
s_nop 0""")
            pack(WF, ACC, 8)
            a(f"buffer_store_dwordx4 {vr(WF,4)}, v{vG0}, {srd(WS)}, s{sA} offen offset:1024 sc1")
            a(f"buffer_store_dwordx4 {vr(WF+4,4)}, v{vG0}, {srd(WS)}, s{sA} offen offset:1536 sc1")
        if role == 'K': a("s_branch L_kvffn")
    a.label("L_kvffn")
    b1_fin()
    a(f"v_add_u32 v{vWA}, {W1A-WSL-64}, v{vWA}")
    for d in range(4):
        if d == 2: a(f"v_subrev_u32 v{vWA}, {W1A}, v{vWA}\ns_waitcnt vmcnt(0)")
        a("s_barrier")
        ffn1_pair(d)
    stamp(3)
    attention()

KV = [0, 12, 24, 36]; QF = 48; OA = 64; SX, SY = 128, 144
vK, vV, vI = 160, 161, 162
def kv_load(b):
    a(f"""buffer_load_dwordx4 {vr(KV[b],4)}, v{vK}, {srd(WS)}, s{sD} offen sc1
s_mov_b64 exec, {sr(sVM,2)}
buffer_load_dwordx4 {vr(KV[b]+4,4)}, v{vV}, {srd(WS)}, s{sD} offen offset:1024 sc1
buffer_load_dwordx4 {vr(KV[b]+8,4)}, v{vV}, {srd(WS)}, s{sD} offen offset:1536 sc1
s_mov_b64 exec, -1
s_add_u32 s{sD}, s{sD}, 8192
s_and_b32 s{sD}, s{sD}, 0x1ffff""")
def qk(dst, kb, q, c="0"):
    a(f"v_mfma_f32_32x32x16_bf16 {vr(dst,16)}, {vr(KV[kb],4)}, {vr(QF+4*q,4)}, {c}")
def pv(q, kb, s, src):
    a(f"v_smfmac_f32_32x32x32_bf16 {vr(OA+16*q,16)}, {vr(KV[kb]+4+4*s,4)}, {vr(src+8*s,8)}, v{vI}")
def ex(r): a(f"v_exp_f32 v{r}, v{r}")
def attention():
    a(f"s_lshl_b32 s{sE}, s{sHP}, 8")
    for j in range(4):
        a(f"""s_add_u32 s{sA}, s{sTT}, {j}
s_and_b32 s{sA}, s{sA}, 3
s_lshl_b32 s{sB}, s{sC}, 2
s_add_u32 s{sA}, s{sA}, s{sB}
s_lshl_b32 s{sA}, s{sA}, 10
s_add_u32 s{sA}, s{sA}, {QST}
v_lshl_add_u32 v{vT0}, v{vL}, 4, s{sA}
ds_read_b128 {vr(QF+4*j,4)}, v{vT0}""")
    a(f"""s_lshl_b32 s{sA}, s{sHP}, 1
s_add_u32 s{sA}, s{sA}, s{sC}
s_lshl_b32 s{sA}, s{sA}, 17
s_lshl_b32 s{sB}, s{sTT}, 11
s_add_u32 s{sA}, s{sA}, s{sB}
s_add_u32 s{sA}, s{sA}, {KVB}
v_lshl_add_u32 v{vK}, v{vL}, 4, s{sA}
v_and_b32 v{vV}, 15, v{vL}
v_lshl_add_u32 v{vV}, v{vV}, 4, s{sA}
v_lshrrev_b32 v{vT0}, 5, v{vL}
v_lshl_add_u32 v{vV}, v{vT0}, 8, v{vV}
v_mov_b32 v{vI}, 0xdddd
s_lshl_b32 s{sD}, s{sRB}, 13""")
    for b in range(4):
        for j in range(8): a(f"v_mov_b32 v{KV[b]+4+j}, 0x3f803f80")
    ffn1_epi(WF)
    poll(sE, vT0, vT1)
    stamp(4)
    kv_load(0); kv_load(1); kv_load(2)
    h_store(WF, sC, vT0)
    for j in range(64): a(f"v_mov_b32 v{OA+j}, 0")
    for j in range(8): a(f"v_mov_b32 v{SY+8+j}, 0")
    a(f"""s_lshl_b32 s{sA}, s{sW}, 2
s_add_u32 s{sA}, s{sA}, {FLG}
v_mov_b32 v{vT0}, s{sA}
v_mov_b32 v{vT1}, 1
s_mov_b32 s{sCNT}, 4
s_waitcnt vmcnt(6) lgkmcnt(0)""")
    stamp(5)
    qk(SX, 0, 0)
    a("s_nop 7\ns_nop 3")
    a(".p2align 3")
    a.label("L_att")
    for kt in range(4):
        for q in range(4):
            Xr, Yr = (SX, SY) if q % 2 == 0 else (SY, SX)
            ex(Xr); ex(Xr+1)
            pv((q+3) % 4, kt if q else (kt+3) % 4, 1, Yr)
            if q == 0: kv_load((kt+3) % 4)
            for j in range(2, 5): ex(Xr+j)
            if q == 3:
                a("s_waitcnt vmcnt(6)")
                qk(Yr, (kt+1) % 4, 0)
                if kt == 1: a(f"ds_write_b32 v{vT0}, v{vT1}")
            else: qk(Yr, kt, q+1)
            for j in range(5, 10): ex(Xr+j)
            pv(q, kt, 0, Xr)
            if q == 3 and kt == 3: a(f"s_sub_u32 s{sCNT}, s{sCNT}, 1\ns_cmp_lg_u32 s{sCNT}, 0")
            for j in range(10, 16): ex(Xr+j)
    a("s_cbranch_scc1 L_att")
    a("s_nop 1")
    pv(3, 3, 1, SY)
    stamp(6)
    for j in range(1, 4):
        a(f"""s_add_u32 s{sA}, s{sTT}, {j}
s_and_b32 s{sA}, s{sA}, 3
s_lshl_b32 s{sB}, s{sC}, 2
s_add_u32 s{sA}, s{sA}, s{sB}
s_mul_i32 s{sA}, s{sA}, 6912
s_add_u32 s{sA}, s{sA}, {2304*(j-1)}
v_lshl_add_u32 v{SX+j}, v{vL}, 4, s{sA}
v_lshl_add_u32 v{SX+4+j}, v{vL}, 2, s{sA}""")
        if j == 3: a("s_nop 3")
    for j in range(1, 4):
        a(f"""ds_write_b128 v{SX+j}, {vr(OA+16*j,4)}
ds_write_b128 v{SX+j}, {vr(OA+16*j+4,4)} offset:1024
ds_write_b32 v{SX+4+j}, v{OA+16*j+8} offset:2048""")
    a(f"""s_mul_i32 s{sA}, s{sW}, 6912
v_lshl_add_u32 v{SX}, v{vL}, 4, s{sA}
v_lshl_add_u32 v{SX+4}, v{vL}, 2, s{sA}
v_and_b32 v{SX+8}, 31, v{vL}
s_lshl_b32 s{sA}, s{sTT}, 7
s_add_u32 s{sA}, s{sA}, {GL}
v_lshl_add_u32 v{SX+8}, v{SX+8}, 2, s{sA}
s_waitcnt lgkmcnt(0)
s_barrier""")
    stamp(7)
    P = OA+16
    for j in range(3):
        a(f"""ds_read_b128 {vr(P+16*j,4)}, v{SX} offset:{2304*j}
ds_read_b128 {vr(P+16*j+4,4)}, v{SX} offset:{2304*j+1024}
ds_read_b32 v{P+16*j+8}, v{SX+4} offset:{2304*j+2048}""")
    vg = SX+9
    a(f"ds_read_b32 v{vg}, v{SX+8}")
    a(f"""s_lshl_b32 s{sA}, s{sRB}, 2
s_add_u32 s{sA}, s{sA}, s{sTT}
s_lshl_b32 s{sA}, s{sA}, 5
s_lshl_b32 s{sB}, s{sHP}, 1
s_add_u32 s{sA}, s{sA}, s{sB}
s_add_u32 s{sA}, s{sA}, s{sC}
s_lshl_b32 s{sF}, s{sA}, 10
s_add_u32 s{sF}, s{sF}, {OB}
v_lshlrev_b32 v{SX+10}, 4, v{vL}""")
    for j in range(3):
        a(f"s_waitcnt lgkmcnt({7-3*j})")
        for r in range(9): a(f"v_add_f32 v{OA+r}, v{OA+r}, v{P+16*j+r}")
    t = SX+11
    a(f"v_mul_f32 v{t}, 0, v{OA}")
    for r in range(1, 8): a(f"v_fmac_f32 v{t}, 0, v{OA+r}")
    a(f"""v_add_f32 v{t}, v{t}, v{OA+8}
v_cmp_nle_f32 vcc, 0x2b800000, v{t}
v_cmp_nge_f32 s[{sA+1}:{sA+2}], v{t+1}, v{t}""".replace(f"v_cmp_nle", f"v_mov_b32 v{t+1}, 0x53800000\nv_cmp_nle"))
    a(f"s_nop 0\ns_or_b64 vcc, vcc, s[{sA+1}:{sA+2}]")
    a("s_cbranch_vccnz L_fb" if not OPT['forcefb'] else "s_branch L_fb")
    a.label("L_fbdone")
    a(f"v_rcp_f32 v{t}, v{OA+8}\ns_waitcnt lgkmcnt(0)\nv_mul_f32 v{t}, v{t}, v{vg}")
    for r in range(8): a(f"v_mul_f32 v{OA+r}, v{OA+r}, v{t}")
    pack(OA, OA, 4)
    a(f"buffer_store_dwordx4 {vr(OA,4)}, v{SX+10}, {srd(WS)}, s{sF} offen sc1")
    R, Cc, A0, A1, A2, A3, OADR, BV, T = 16, 17, 18, 19, 20, 21, 22, 24, 32
    a(f"""s_waitcnt vmcnt(0)
s_barrier""")
    stamp(8)
    a(f"""v_lshrrev_b32 v{R}, 3, v{vL}
s_lshl_b32 s{sA}, s{sW}, 3
v_add_u32 v{R}, s{sA}, v{R}
v_and_b32 v{Cc}, 7, v{vL}
s_lshr_b32 s{sA}, s{sHP}, 1
s_lshl_b32 s{sA}, s{sA}, 7
v_lshl_add_u32 v{A0}, v{Cc}, 4, s{sA}
buffer_load_dwordx4 {vr(BV,4)}, v{A0}, {srd(B2)}, 0 offen
s_and_b32 s{sB}, s{sHP}, 1
s_lshl_b32 s{sB}, s{sB}, 6
v_add_u32 v{A1}, s{sB}, v{R}
v_lshlrev_b32 v{A2}, 2, v{A1}
v_add_u32 v{A2}, {GL}, v{A2}
ds_read_b32 v{vg}, v{A2}
s_lshl_b32 s{sB}, s{sRB}, 7
v_add_u32 v{A1}, s{sB}, v{A1}
v_lshl_add_u32 v{OADR}, v{A1}, 10, v{A0}
v_lshlrev_b32 v{A0}, 1, v{Cc}
v_and_b32 v{A1}, 15, v{R}
v_xor_b32 v{A0}, v{A0}, v{A1}
v_lshlrev_b32 v{A0}, 4, v{A0}
v_lshl_add_u32 v{A0}, v{R}, 8, v{A0}
v_xor_b32 v{A1}, 16, v{A0}
v_add_u32 v{A2}, {FP[3]}, v{A0}
v_add_u32 v{A3}, {FP[3]}, v{A1}
s_waitcnt vmcnt(0) lgkmcnt(0)
v_sub_f32 v{vg}, 1.0, v{vg}""")
    for q in range(4):
        a(f"v_lshlrev_b32 v{T+2*q}, 16, v{BV+q}\nv_and_b32 v{T+2*q+1}, 0xffff0000, v{BV+q}")
    for r in range(8): a(f"v_mul_f32 v{T+r}, v{T+r}, v{vg}")
    a("s_barrier\ns_barrier")
    stamp(9)
    for p in range(4):
        x0, x1, o = (A0, A1, FP[p]) if p < 3 else (A2, A3, 0)
        a(f"ds_read_b128 {vr(64+8*p,4)}, v{x0} offset:{o}\nds_read_b128 {vr(68+8*p,4)}, v{x1} offset:{o}")
    for p in range(4):
        a(f"s_waitcnt lgkmcnt({6-2*p})")
        for r in range(8): a(f"v_add_f32 v{T+r}, v{T+r}, v{64+8*p+r}")
    pack(T, T, 4)
    a(f"buffer_store_dwordx4 {vr(T,4)}, v{OADR}, {srd(OUT)}, 0 offen")
    stamp(10)
    a("s_branch L_end")
    fallback()

def fallback():
    M, NC = SY, 96
    a.label("L_fb")
    a(f"""s_waitcnt vmcnt(0) lgkmcnt(0)
s_lshl_b32 s{sA}, s{sTT}, 11
v_subrev_u32 v{vK}, s{sA}, v{vK}
v_subrev_u32 v{vV}, s{sA}, v{vV}
v_mov_b32 v{M}, 0xff800000
s_mov_b32 s{sD}, 0""")
    a.label("L_fb1")
    a(f"buffer_load_dwordx4 {vr(KV[0],4)}, v{vK}, {srd(WS)}, s{sD} offen sc1\ns_waitcnt vmcnt(0)")
    qk(NC, 0, 0)
    a("s_nop 7\ns_nop 3")
    for j in range(8): a(f"v_max3_f32 v{M}, v{NC+2*j}, v{NC+2*j+1}, v{M}")
    a(f"s_add_u32 s{sD}, s{sD}, 2048\ns_cmp_lg_u32 s{sD}, 131072\ns_cbranch_scc1 L_fb1")
    a(f"""v_mov_b32 v{M+1}, v{M}
s_nop 1
v_permlane32_swap_b32 v{M}, v{M+1}
s_nop 1
v_max_f32 v{M}, v{M}, v{M+1}""")
    for j in range(16): a(f"v_sub_f32 v{112+j}, 0, v{M}\nv_mov_b32 v{OA+j}, 0")
    a(f"s_mov_b32 s{sD}, 0")
    a.label("L_fb2")
    a(f"""buffer_load_dwordx4 {vr(KV[0],4)}, v{vK}, {srd(WS)}, s{sD} offen sc1
s_mov_b64 exec, {sr(sVM,2)}
buffer_load_dwordx4 {vr(KV[0]+4,4)}, v{vV}, {srd(WS)}, s{sD} offen offset:1024 sc1
buffer_load_dwordx4 {vr(KV[0]+8,4)}, v{vV}, {srd(WS)}, s{sD} offen offset:1536 sc1
s_mov_b64 exec, -1
s_waitcnt vmcnt(0)""")
    qk(NC, 0, 0, vr(112,16))
    a("s_nop 7\ns_nop 3")
    for j in range(16): ex(NC+j)
    a("s_nop 1")
    pv(0, 0, 0, NC); pv(0, 0, 1, NC)
    a(f"s_add_u32 s{sD}, s{sD}, 2048\ns_cmp_lg_u32 s{sD}, 131072\ns_cbranch_scc1 L_fb2")
    a("s_nop 7\ns_nop 3\ns_branch L_fbdone")

def role_q():
    a.label("L_roleQ")
    w_addr(False)
    a(f"""v_add_u32 v{vWA}, {WSL}, v{vWA}
s_mul_i32 s{sLD}, s{sTT}, 3072
s_mov_b32 s{sC}, 2""")
    a(f"""v_lshlrev_b32 v1, 2, v{vL}
v_add_u32 v2, {FLG}, v1
v_mov_b32 v3, 0
s_lshl_b32 s{sA}, s{sST}, 7
v_lshl_add_u32 v4, v{vL}, 4, s{sA}
v_and_b32 v4, 1023, v4
s_mul_i32 s{sA}, s{sHP}, 192
v_add_u32 v5, s{sA}, v1
v_lshlrev_b32 v6, 8, v{vL}
s_waitcnt lgkmcnt(0)""")
    a(f"""s_cmp_lg_u32 s{sW}, 11
s_cbranch_scc1 L_q1
s_cmp_lg_u32 s2, 0
s_cbranch_scc1 L_q0
s_mov_b64 exec, 0xffffffffffff
buffer_store_dword v3, v6, {srd(WS)}, 0 offen sc1
s_mov_b64 exec, -1""".replace("s_mov_b64 exec, 0xffffffffffff", "s_mov_b32 exec_hi, 0xffff"))
    a.label("L_q0")
    a(f"""ds_write_b32 v2, v3
s_mov_b32 m0, {GWL}
s_nop 0
buffer_load_dwordx4 v4, {srd(GW)}, 0 offen lds
s_mov_b32 m0, {B1L}
s_nop 0
buffer_load_dword v5, {srd(B1)}, 0 offen lds""")
    a.label("L_q1")
    load_w(0, WQKV, 3072, WSL); load_w(1, WQKV, 3072, WSL+12288)
    for i in range(8):
        a(f"s_waitcnt vmcnt({3 if i<7 else 6})")
        if i == 0:
            a(f"""s_cmp_lg_u32 s{sW}, 11
s_cbranch_scc1 L_q2
s_cmp_lg_u32 s2, 0
s_cbranch_scc1 L_q2
v_mov_b32 v4, 1
s_mov_b64 exec, 1
buffer_store_dword v4, v3, {srd(DBG)}, 0 offen sc1
s_mov_b64 exec, -1""")
            a.label("L_q2")
        a("s_barrier")
        if i == 0: stamp(1)
        if i < 6: load_w(i+2, WQKV, 3072, WSL+12288*((i+2) % 3))
        else:
            if i == 6: w_addr(True)
            for c in (2*i-12, 2*i-11): load_w(c, W1, 2752, W1A+12288*c)
        qkv_step(i, 'Q')
    stamp(2)
    b1_init(sC)
    a(f"""s_lshl_b32 s{sA}, s{sTT}, 10
s_add_u32 s{sA}, s{sA}, {QST}
v_lshl_add_u32 v{vXA}, v{vL}, 4, s{sA}
s_mov_b32 s{sA}, {QSC}
s_nop 1""")
    for j in range(16): a(f"v_mul_f32 v{ACC+j}, s{sA}, v{ACC+j}")
    pack(WF, ACC, 8)
    a(f"ds_write_b128 v{vXA}, {vr(WF,4)}\nds_write_b128 v{vXA}, {vr(WF+4,4)} offset:4096")
    b1_fin()
    a(f"v_add_u32 v{vWA}, {W1A-WSL+128}, v{vWA}")
    for d in range(4):
        if d < 3: a(f"s_waitcnt vmcnt({[6,12,6][d]})")
        else:
            a(f"s_waitcnt vmcnt(1)\ns_cmp_eq_u32 s{sW}, 8\ns_cbranch_scc1 L_d3\ns_waitcnt vmcnt(0)")
            a.label("L_d3")
        if d == 2: a(f"v_subrev_u32 v{vWA}, {W1A}, v{vWA}")
        a("s_barrier")
        if d == 0:
            a(f"v_mov_b32 v{vT0}, 0\ns_cmp_lg_u32 s{sW}, 8\ns_cbranch_scc1 L_d0\nbuffer_load_dword v{vT1}, v{vT0}, {srd(DBG)}, 0 offen sc1")
            a.label("L_d0")
            for c in range(4, 8): load_w(c, W1, 2752, 12288*(c-4))
        if d == 2:
            a(f"s_cmp_lg_u32 s{sW}, 8\ns_cbranch_scc1 L_s1done")
            a.label("L_boot")
            a(f"""v_cmp_eq_u32 vcc, 1, v{vT1}
s_nop 0
s_cbranch_vccnz L_bootok
buffer_load_dword v{vT1}, v{vT0}, {srd(DBG)}, 0 offen sc1
s_waitcnt vmcnt(0)""")
            spin("L_boot", "L_bootok", 1)
            a.label("L_bootok")
            a(f"s_lshl_b32 s{sA}, s{sHP}, 8")
            signal(sA, vT0, vT1)
            a.label("L_s1done")
        ffn1_pair(d)
    stamp(3)
    gemm()

GA = 0
HF = [64, 72, 80, 88]
WR = 96
vH, vWa, vWb, vR0, vR1 = 160, 161, 162, 163, 164
def gemm():
    if OPT['prio']: a("s_setprio 2")
    a(f"""v_lshrrev_b32 v{vT0}, 3, v{vL}
v_lshlrev_b32 v{vT0}, 10, v{vT0}
v_bfe_u32 v{vT1}, v{vL}, 4, 1
v_lshlrev_b32 v{vT1}, 2, v{vT1}
v_and_b32 v{vWa}, 7, v{vL}
v_xor_b32 v{vWa}, v{vWa}, v{vT1}
v_lshl_add_u32 v{vWa}, v{vWa}, 4, v{vT0}
s_lshr_b32 s{sA}, s{sHP}, 1
s_lshl_b32 s{sA}, s{sA}, 7
v_add_u32 v{vWa}, s{sA}, v{vWa}
v_add_u32 v{vWb}, 8192, v{vWa}""")
    ffn1_epi(WF)
    h_store(WF, sC, vT0)
    a(f"v_lshrrev_b32 v{vT0}, 5, v{vL}\nv_lshlrev_b32 v{vT0}, 4, v{vT0}\nv_add_u32 v{vT0}, {GWL}, v{vT0}")
    G4 = [152, 156, 144, 148]
    for k in range(4): a(f"ds_read_b128 {vr(G4[k],4)}, v{vT0} offset:{32*k}")
    for k in range(32):
        a(f"s_waitcnt lgkmcnt({min(3,31-k)})")
        a(f"v_mfma_f32_32x32x16_bf16 {vr(ACC,16)}, {vr(G4[k%4],4)}, {vr(4*k,4)}, {'0' if k==0 else vr(ACC,16)}")
        if k < 28: a(f"ds_read_b128 {vr(G4[k%4],4)}, v{vT0} offset:{32*(k+4)}")
    a(f"""s_lshl_b32 s{sA}, s{sW}, 2
s_add_u32 s{sA}, s{sA}, {FLG}
v_mov_b32 v{vT0}, s{sA}
v_mov_b32 v{vT1}, 1
s_waitcnt vmcnt(0)
ds_write_b32 v{vT0}, v{vT1}""")
    a(f"s_lshl_b32 s{sA}, s{sTT}, 17\ns_lshl_b32 s{sB}, s{sTT}, 14\ns_add_u32 s{sB}, s{sB}, {WOL}")
    for n in range(8):
        a(f"""s_add_u32 m0, s{sB}, {2048*n}
s_nop 0
buffer_load_dwordx4 v{vWa}, {srd(WO)}, s{sA} offen lds
s_add_u32 m0, s{sB}, {2048*n+1024}
s_nop 0
buffer_load_dwordx4 v{vWb}, {srd(WO)}, s{sA} offen lds
s_add_u32 s{sA}, s{sA}, 16384""")
    a(f"""v_mul_f32 v{ACC}, 0xbfb8aa3b, v{ACC}
v_exp_f32 v{ACC}, v{ACC}
v_and_b32 v{vT0}, 31, v{vL}
v_add_f32 v{ACC}, 1.0, v{ACC}
v_rcp_f32 v{ACC}, v{ACC}
s_lshl_b32 s{sA}, s{sTT}, 7
s_add_u32 s{sA}, s{sA}, {GL}
v_lshl_add_u32 v{vT0}, v{vT0}, 2, s{sA}
ds_write_b32 v{vT0}, v{ACC}""")
    a(f"""v_lshrrev_b32 v{vT0}, 5, v{vL}
v_bfe_u32 v{vT1}, v{vL}, 2, 2
v_lshl_add_u32 v{vT0}, v{vT0}, 2, v{vT1}
v_lshlrev_b32 v{vT0}, 7, v{vT0}
v_bfe_u32 v{vT1}, v{vL}, 4, 1
v_lshl_add_u32 v{vT0}, v{vT1}, 5, v{vT0}
v_and_b32 v{vT1}, 3, v{vL}
v_lshl_add_u32 v{vT0}, v{vT1}, 3, v{vT0}
v_bfe_u32 v{vT1}, v{vL}, 3, 1
v_lshl_add_u32 v{vT0}, v{vT1}, 6, v{vT0}
s_lshl_b32 s{sLD}, s{sTT}, 13
s_add_u32 s{sLD}, s{sLD}, {RING}
v_add_u32 v{vR0}, s{sLD}, v{vT0}
v_xor_b32 v{vR1}, 64, v{vR0}""")
    for j in range(64): a(f"v_mov_b32 v{GA+j}, 0")
    a(f"""s_mul_i32 s{sD}, s{sTT}, 22
s_cmp_eq_u32 s{sTT}, 3
s_subb_u32 s{sD}, s{sD}, 0
s_lshr_b32 s{sA}, s{sTT}, 1
s_sub_u32 s{sCNT}, 22, s{sA}
s_add_u32 s{sE}, s{sD}, s{sCNT}
s_sub_u32 s{sE}, s{sE}, 1
s_lshl_b32 s{sA}, s{sRB}, 2
s_and_b32 s{sB}, s{sHP}, 1
s_lshl_b32 s{sB}, s{sB}, 1
s_add_u32 s{sF}, s{sA}, s{sB}
s_mul_i32 s{sA}, s{sF}, {86*1024}
s_add_u32 s{sA}, s{sA}, {HB}
v_lshl_add_u32 v{vH}, v{vL}, 4, s{sA}""")
    a(f"s_lshl_b32 s{sC}, s{sRB}, 8\ns_add_u32 s{sC}, s{sC}, 4096")
    a(f"s_cmp_lg_u32 s{sW}, 8\ns_cbranch_scc1 L_s2done")
    a(f"v_lshlrev_b32 v{vT0}, 2, v{vL}\nv_add_u32 v{vT0}, {FLG}, v{vT0}\ns_mov_b64 exec, 0xfff")
    a.label("L_flg")
    a(f"""ds_read_b32 v{vT1}, v{vT0}
s_waitcnt lgkmcnt(0)
v_cmp_ne_u32 vcc, 1, v{vT1}
s_nop 0
s_cbranch_vccz L_flgok""")
    spin("L_flg", "L_flgok", 4)
    a.label("L_flgok")
    a("s_mov_b64 exec, -1")
    signal(sC, vT0, vT1)
    a.label("L_s2done")
    stamp(4)
    poll(sC, vT0, vT1)
    stamp(5)
    def issue(st):
        a(f"""s_lshl_b32 s{sA}, s{sD}, 14
s_add_u32 m0, s{sLD}, {2048*st}
s_lshl_b32 s{sB}, s{sD}, 10
buffer_load_dwordx4 v{vWa}, {srd(W2)}, s{sA} offen lds
s_add_u32 m0, s{sLD}, {2048*st+1024}
buffer_load_dwordx4 {vr(HF[st],4)}, v{vH}, {srd(WS)}, s{sB} offen sc1
buffer_load_dwordx4 v{vWb}, {srd(W2)}, s{sA} offen lds
s_add_u32 s{sB}, s{sB}, {86*1024}
s_add_u32 s{sD}, s{sD}, 1
buffer_load_dwordx4 {vr(HF[st]+4,4)}, v{vH}, {srd(WS)}, s{sB} offen sc1
s_min_u32 s{sD}, s{sD}, s{sE}""")
    def wread(r, o):
        a(f"""ds_read_b64_tr_b16 {vr(r,2)}, v{vR0} offset:{o}
ds_read_b64_tr_b16 {vr(r+2,2)}, v{vR0} offset:{o+1024}
ds_read_b64_tr_b16 {vr(r+4,2)}, v{vR1} offset:{o}
ds_read_b64_tr_b16 {vr(r+6,2)}, v{vR1} offset:{o+1024}""")
    def mm(tt, ct, w, h):
        g = vr(GA+32*tt+16*ct, 16)
        a(f"v_mfma_f32_32x32x16_bf16 {g}, {vr(w+4*ct,4)}, {vr(h+4*tt,4)}, {g}")
    for st in range(4): issue(st)
    a.label("L_f2")
    for st in range(4):
        a("s_waitcnt vmcnt(12)")
        wread(WR, 2048*st)
        a("s_waitcnt lgkmcnt(2)")
        mm(0, 0, WR, HF[st]); mm(1, 0, WR, HF[st])
        a("s_waitcnt lgkmcnt(0)")
        mm(0, 1, WR, HF[st]); mm(1, 1, WR, HF[st])
        a(f"s_sub_u32 s{sCNT}, s{sCNT}, 1\ns_cmp_eq_u32 s{sCNT}, 0\ns_cbranch_scc1 L_f2done")
        issue(st)
    a("s_branch L_f2")
    a.label("L_f2done")
    stamp(6)
    a(f"""s_lshl_b32 s{sA}, s{sTT}, 14
s_add_u32 s{sA}, s{sA}, {WOL}
s_sub_u32 s{sA}, s{sA}, s{sLD}
v_add_u32 v{vR0}, s{sA}, v{vR0}
v_add_u32 v{vR1}, s{sA}, v{vR1}
s_lshl_b32 s{sA}, s{sF}, 15
s_lshl_b32 s{sB}, s{sTT}, 13
s_add_u32 s{sA}, s{sA}, s{sB}
s_add_u32 s{sA}, s{sA}, {OB}
v_lshl_add_u32 v{vH}, v{vL}, 4, s{sA}
v_and_b32 v{vT0}, 31, v{vL}
s_and_b32 s{sB}, s{sHP}, 1
s_lshl_b32 s{sB}, s{sB}, 8
s_add_u32 s{sB}, s{sB}, {GL}
v_lshl_add_u32 v{vWb}, v{vT0}, 2, s{sB}
v_lshrrev_b32 v{vT1}, 5, v{vL}
v_and_b32 v{vWa}, 15, v{vL}
v_xor_b32 v{vWa}, v{vWa}, v{vT1}
v_lshlrev_b32 v{vWa}, 4, v{vWa}
v_lshl_add_u32 v{vWa}, v{vT0}, 8, v{vWa}
s_lshl_b32 s{sA}, s{sTT}, 14
s_cmp_eq_u32 s{sTT}, 3
s_cselect_b32 s{sA}, {FP[3]}, s{sA}
v_add_u32 v{vWa}, s{sA}, v{vWa}
s_lshl_b32 s{sC}, s{sRB}, 8
s_add_u32 s{sC}, s{sC}, 8192
s_waitcnt vmcnt(0)
s_barrier""")
    stamp(7)
    a(f"ds_read_b32 v{vT0}, v{vWb}\nds_read_b32 v{vT1}, v{vWb} offset:128")
    W8 = 128
    for k in range(4): wread(W8+8*k, 2048*k)
    a(f"s_waitcnt lgkmcnt(15)\ns_waitcnt lgkmcnt(15)\nv_sub_f32 v{vT0}, 1.0, v{vT0}\nv_sub_f32 v{vT1}, 1.0, v{vT1}".replace("s_waitcnt lgkmcnt(15)\ns_waitcnt lgkmcnt(15)", "s_waitcnt lgkmcnt(0)"))
    for j in range(64): a(f"v_mul_f32 v{GA+j}, v{GA+j}, v{vT0 if j<32 else vT1}")
    a("s_barrier")
    a(f"s_cmp_lg_u32 s{sW}, 8\ns_cbranch_scc1 L_s3done")
    signal(sC, vT0, vT1)
    poll(sC, vT0, vT1)
    a.label("L_s3done")
    a("s_barrier")
    stamp(8)
    OF = 64
    for k in range(8):
        a(f"s_mov_b32 s{sA}, {4096*(k//4)}\ns_mov_b32 s{sB}, {32768+4096*(k//4)}" if k % 4 == 0 else "")
        a(f"buffer_load_dwordx4 {vr(OF+8*k,4)}, v{vH}, {srd(WS)}, s{sA} offen offset:{1024*(k%4)} sc1")
        a(f"buffer_load_dwordx4 {vr(OF+8*k+4,4)}, v{vH}, {srd(WS)}, s{sB} offen offset:{1024*(k%4)} sc1")
    for k in range(8):
        a(f"s_waitcnt vmcnt({14-2*k})" + (f" lgkmcnt({min(12,4*(7-k))})" if k >= 4 else ""))
        w = W8+8*(k % 4)
        mm(0, 0, w, OF+8*k); mm(1, 0, w, OF+8*k); mm(0, 1, w, OF+8*k); mm(1, 1, w, OF+8*k)
        if k < 4: wread(w, 2048*(k+4))
    stamp(9)
    for ct in range(2):
        for q in range(4):
            a(f"v_xor_b32 v{64+4*ct+q}, {(8*ct+2*q)*16}, v{vWa}")
    a("s_nop 1")
    for ct in range(2):
        for tt in range(2):
            for q in range(4):
                a(f"ds_write_b128 v{64+4*ct+q}, {vr(GA+32*tt+16*ct+4*q,4)} offset:{8192*tt}")
    a("s_waitcnt lgkmcnt(0)\ns_barrier")
    stamp(10)

def epilogue():
    a.label("L_end")
    if OPT['prof']:
        a(f"s_memtime {sr(sPR+22,2)}\ns_waitcnt lgkmcnt(0)")
        for i in range(12): a(f"v_writelane_b32 v1, s{sPR+2*i}, {i}")
        a(f"""s_mul_i32 s{sA}, s2, 12
s_add_u32 s{sA}, s{sA}, s{sW}
s_lshl_b32 s{sA}, s{sA}, 6
s_add_u32 s{sA}, s{sA}, {PRB}
v_lshlrev_b32 v2, 2, v{vL}
s_mov_b64 exec, 0xfff
buffer_store_dword v1, v2, {srd(WS)}, s{sA} offen""")
    a.label("L_exit")
    a("s_endpgm")

prologue(); role_kv(); role_q(); epilogue()
probs = check(a.lines)
for p in probs: print(p, file=sys.stderr)
hdr = f"""; fused gate / QKV / attention / FFN / output kernel (generated by gen/gen.py)
; @launch grid=(256,1,1) block=(768,1,1) lds=163840
.amdgcn_target "amdgcn-amd-amdhsa--gfx950"
.text
.globl {NAME}_kernel
.p2align 8
.type {NAME}_kernel,@function
{NAME}_kernel:
"""
ftr = f""".section .rodata,"a"
.p2align 6
.amdhsa_kernel {NAME}_kernel
  .amdhsa_next_free_vgpr 168
  .amdhsa_next_free_sgpr 102
  .amdhsa_accum_offset 168
  .amdhsa_group_segment_fixed_size 0
  .amdhsa_kernarg_size 96
  .amdhsa_user_sgpr_count 2
  .amdhsa_user_sgpr_kernarg_segment_ptr 1
  .amdhsa_system_sgpr_workgroup_id_x 1
.end_amdhsa_kernel
"""
open(sys.argv[1], "w").write(hdr + a.text() + ftr)
```

```python
import sys, os
sys.path.insert(0, os.path.dirname(os.path.abspath(__file__)))
from asmlib import Asm, vr, sr, check
NAME = "gated_mix__softmax_full_mha__dense_activation_squared_relu__prompt"
OPT = dict(prof=0, prio=3, forcefb=0, bound=0, map=0, aprio=8, rot=10, late=1, pipe=1, nof2=0, f2s=1, ns=3, sig=1, gpre=0, prio2=1, w1s=0, hl=0, gdot=0, w1p=6788, kvi=1, m23=1, sg0=1, qb=1, fill=1, pf=0, ib=1, qp=1, slp=1, prio3=0, clr=2)
for a_ in sys.argv[2:]:
    k, v = a_.split("="); OPT[k] = int(v)

X, WQKV, W1, W2, WO, B1, B2, GW, OUT, DBG, WS = 4, 8, 12, 16, 20, 24, 28, 32, 36, 40, 44
sW, sHP, sRB, sST, sTT = 48, 49, 50, 51, 52
sA, sB, sC, sD, sE, sF = 53, 54, 55, 56, 57, 58
sLD = 59
sVM = 60
sCNT = 62
sPR = 64
KVB, HB, OB, PRB = 1 << 20, 8 << 20, 16 << 20, 32 << 20
NS = OPT['ns']; SL = 28672
def XS(i): return SL*(i % NS)
def WSL(i): return SL*(i % NS) + 16384
W1P = {5: [(4, 3*SL), (5, 4*SL), (6, 0), (7, SL)], 4: [(5, 4*SL), (5, 0), (6, SL), (7, 2*SL)],
       3: [(6, 3*SL), (6, 4*SL), (6, 2*SL), (7, 0)]}[NS]
W1P = [(max(st, int(str(OPT['w1p'])[d])), b) for d, (st, b) in enumerate(W1P)]
assert OPT['sg0'] or max(st for st, b in W1P) - 8 < OPT['sig']
WOL = 55296
RING = 120832
QST = 153600
GWL = 161792
B1L = 162816
GL = 163072
FLG = 163584
FP = [WOL+16384*p for p in range(4)]
ACC, WF, vXA, vWA, vG0, vG1, vG2, vL, vT0, vT1 = 128, 144, 160, 161, 162, 163, 164, 165, 166, 167
QSC = 0x3eb8aa3b

a = Asm()
NL = chr(10)
nstamp = [0]
def stamp2(i):
    if OPT['prof'] == 2: a(f"s_memtime {sr(sPR+2*i,2)}")
def stamp3(i):
    if OPT['prof'] == 3: a(f"s_memtime {sr(sPR+2*i,2)}")
def stamp(i):
    if OPT['prof'] == 1 or (OPT['prof'] and i == 0):
        a(f"s_memtime {sr(sPR+2*i,2)}")
def srd(s): return sr(s, 4)
def spin(L, D, slp):
    if OPT['bound']:
        a(f"s_add_u32 s63, s63, 1\ns_cmp_gt_u32 s63, 100000\ns_cbranch_scc1 {D}")
    a(f"s_sleep {slp}\ns_branch {L}")

def rot8(p):
    t = f"s_add_u32 s{sA}, s{sRB}, s{sHP}{NL}s_and_b32 s{sA}, s{sA}, 3{NL}s_lshl_b32 s{sST}, s{sA}, 1"
    if p == 3: return f"s_add_u32 s{sA}, s{sRB}, s{sHP}{NL}s_and_b32 s{sA}, s{sA}, 1{NL}s_lshl_b32 s{sA}, s{sA}, 2{NL}s_and_b32 s{sB}, s2, 3{NL}s_add_u32 s{sST}, s{sA}, s{sB}"
    if p: t += f"{NL}s_bfe_u32 s{sA}, s2, {0x10002 if p == 1 else 0x10000}{NL}s_add_u32 s{sST}, s{sST}, s{sA}"
    return t
def prologue():
    a(f"s_cmp_ge_u32 s2, 256\ns_cbranch_scc1 L_exit")
    for s, off in ((X,0),(WQKV,8),(GW,64),(B1,40),(WS,88),(W1,32),(DBG,80),(WO,16),(W2,48),(B2,56),(OUT,72)):
        a(f"s_load_dwordx2 {sr(s,2)}, s[0:1], {off}")
    stamp(0)
    if OPT['prof']: a(f"s_memrealtime {sr(sPR+24,2)}")
    a(f"v_lshrrev_b32 v1, 6, v0\nv_and_b32 v{vL}, 63, v0")
    for s, sz in ((X,2097152),(WQKV,1572864),(W1,1409024),(W2,1409024),(WO,524288),(B1,2752),(B2,1024),(GW,1024),(OUT,2097152),(DBG,256),(WS,268435456)):
        a(f"s_mov_b32 s{s+2}, {sz}\ns_mov_b32 s{s+3}, 0x20000")
    a(f"v_readfirstlane_b32 s{sW}, v1")
    a(f"""s_and_b32 s{sA}, s2, 3
s_lshl_b32 s{sA}, s{sA}, 2
s_bfe_u32 s{sB}, s2, 0x20003
s_add_u32 s{sRB}, s{sA}, s{sB}
s_bfe_u32 s{sA}, s2, 0x10002
s_lshr_b32 s{sB}, s2, 5
s_lshl_b32 s{sB if OPT['map'] else sA}, s{sB if OPT['map'] else sA}, {1 if OPT['map'] else 3}
s_add_u32 s{sHP}, s{sA}, s{sB}
{["s_mov_b32 s%d, 0"%sST, "s_and_b32 s%d, s%d, 7"%(sST,sHP), "s_and_b32 s%d, s%d, 6"%(sST,sHP),
"s_lshl_b32 s%d, s%d, 1"%(sA,sRB)+NL+"s_add_u32 s%d, s%d, s%d"%(sA,sA,sHP)+NL+"s_and_b32 s%d, s%d, 7"%(sST,sA),
"s_lshl_b32 s%d, s%d, 1"%(sA,sRB)+NL+"s_and_b32 s%d, s%d, 7"%(sST,sA), "s_and_b32 s%d, s%d, 4"%(sST,sHP), "s_and_b32 s%d, s2, 7"%sST,
"s_lshr_b32 s%d, s2, 3"%sA+NL+"s_and_b32 s%d, s%d, 1"%(sA,sA)+NL+"s_lshl_b32 s%d, s%d, 2"%(sA,sA)+NL+"s_add_u32 s%d, s%d, s2"%(sA,sA)+NL+"s_and_b32 s%d, s%d, 7"%(sST,sA),
rot8(0), rot8(1), rot8(2), rot8(3)][OPT['rot']]}
s_and_b32 s{sTT}, s{sW}, 3
s_mov_b32 s{sVM}, 0xffff
s_mov_b32 s{sVM+1}, 0xffff""")
    if OPT['bound']: a("s_mov_b32 s63, 0")
    a(f"""v_and_b32 v1, 31, v{vL}
v_lshrrev_b32 v2, 5, v{vL}
v_bfe_u32 v3, v{vL}, 1, 3
v_xor_b32 v3, v3, v2
v_lshlrev_b32 v3, 4, v3
v_lshl_add_u32 v3, v1, 7, v3
s_lshl_b32 s{sA}, s{sTT}, 12
v_add_u32 v{vXA}, s{sA}, v3""")
    if OPT['qp']:
        a(f"s_cmp_lt_u32 s{sW}, 8\ns_cbranch_scc1 L_roleKV")
        role_q_head()
        a.label("L_roleKV")
    else: a(f"s_cmp_ge_u32 s{sW}, 8\ns_cbranch_scc1 L_roleQ")
def wa64(t0, t1, base_s, stride=64):
    a(f"""v_lshrrev_b32 v{t0}, 5, v{vL}
v_bfe_u32 v{t1}, v{vL}, 2, 2
v_lshl_add_u32 v{t0}, v{t0}, 3, v{t1}
v_mul_u32_u24 v{t0}, {stride}, v{t0}
v_add_u32 v{t0}, s{base_s}, v{t0}
v_bfe_u32 v{t1}, v{vL}, 4, 1
v_lshl_add_u32 v{t0}, v{t1}, 5, v{t0}
v_and_b32 v{t1}, 3, v{vL}
v_lshl_add_u32 v{vWA}, v{t1}, 3, v{t0}""")

def chunk_off(dst, i, mul):
    a(f"s_add_u32 s{dst}, s{sST}, {i}\ns_and_b32 s{dst}, s{dst}, 7\ns_mul_i32 s{dst}, s{dst}, {mul}")
def capture(f, *args):
    n = len(a.lines); f(*args); out = a.lines[n:]; del a.lines[n:]
    groups = [[]]
    for l in out:
        groups[-1].append(l)
        if l.startswith("buffer_load"): groups.append([])
    return ["\n".join(g) for g in groups if g]
def load_x(i):
    chunk_off(sA, i, 128)
    a(f"s_add_u32 m0, s{sLD}, {XS(i)}\ns_nop 0\nbuffer_load_dwordx4 v{vG0}, {srd(X)}, s{sA} offen lds")
    a(f"s_add_u32 m0, s{sLD}, {XS(i)+1024}\ns_mul_i32 s{sB}, s{sA}, 1536\nbuffer_load_dwordx4 v{vG1}, {srd(X)}, s{sA} offen lds")
    a(f"s_add_u32 m0, s{sD}, {WSL(i)}\ns_nop 0\nbuffer_load_dwordx4 v{vG2}, {srd(WQKV)}, s{sB} offen lds")
def load_wq(i):
    chunk_off(sA, i, 64*3072)
    a(f"s_add_u32 m0, s{sLD}, {WSL(i)+8192}\ns_nop 0\nbuffer_load_dwordx4 v{vG0}, {srd(WQKV)}, s{sA} offen lds")
def load_w1(c, vg):
    chunk_off(sA, c, 64*2752)
    a(f"s_add_u32 m0, s{sD}, {W1P[c//2][1]+12288*(c%2)}\ns_nop 0\nbuffer_load_dwordx4 v{vg}, {srd(W1)}, s{sA} offen lds")
def w1_loads(cs, vg=vG0): return sum((capture(load_w1, c, vg) for c in cs), [])
def step_loads(i, vm, ldf, nper, vg=vG0):
    out = []
    if i + NS - 1 < 8:
        out += capture(ldf, i + NS - 1); vm.add(('s', i + NS - 1), nper)
    if i == W1P[0][0] and vg == vG0: w1_addr(vG0)
    for d in range(4):
        if W1P[d][0] == i:
            out += w1_loads((2*d, 2*d+1), vg); vm.add(('w', d), 2)
    return out
def d_phase(d, vm, vg, kvrole, sigcode, pre=None):
    done = vm.done
    if OPT['sg0']:
        need = d not in done
        if need:
            last = 3 if (d == 2 and OPT['m23']) else d
            vm.wait(('w', last)); done.update(range(d, last+1))
        if pre: pre()
        stamp3(2+2*d)
        if need and not (d == 0 and not kvrole and OPT['qb']): a("s_barrier")
        if d == 0 and kvrole:
            vm.wait('kv'); sigcode()
        stamp3(3+2*d)
        out = []
        for e in range(4):
            if W1P[e][0] == 8 + d:
                out += w1_loads((2*e, 2*e+1), vg); vm.add(('w', e), 2)
        return out
    if d == OPT['sig'] and kvrole:
        vm.wait('kv'); sigcode()
    need = d not in done
    if need:
        ws = [d]
        if d == OPT['sig']: ws = [e for e in range(d, 4) if W1P[e][0] <= 7] or [d]
        if d > OPT['sig'] and d == 2 and W1P[3][0] <= W1P[2][0] and OPT['m23']: ws = [2, 3]
        last = max(ws + [d])
        if not (kvrole and d == OPT['sig'] and W1P[last][0] <= 7):
            if kvrole and d > OPT['sig'] and vm.cnt(('w', last)) == 0:
                L = a.newlabel("w")
                a(f"s_waitcnt vmcnt(1)\ns_cmp_eq_u32 s{sE}, 2\ns_cbranch_scc1 {L}\ns_waitcnt vmcnt(0)"); a.label(L)
            else: vm.wait(('w', last))
        done.update(range(d, last+1))
    if pre: pre()
    stamp3(2+2*d)
    if need and not (d == 0 and not kvrole and OPT['qb']): a("s_barrier")
    stamp3(3+2*d)
    out = []
    for e in range(4):
        if W1P[e][0] == 8 + d:
            out += w1_loads((2*e, 2*e+1), vg); vm.add(('w', e), 2)
    return out
class VM:
    def __init__(s): s.q = []; s.done = set()
    def cnt(s, tag): return len(s.q) - 1 - max(k for k, t in enumerate(s.q) if t == tag)
    def add(s, tag, n=1): s.q += [tag]*n
    def wait(s, tag):
        n = len(s.q) - 1 - max(k for k, t in enumerate(s.q) if t == tag)
        a(f"s_waitcnt vmcnt({n})")
class Base:
    def __init__(s, reg, adj=0): s.reg = reg; s.adj = adj
    def off(s, o, span):
        if o - s.adj < 0 or o - s.adj + span > 65535:
            a(f"v_add_u32 v{s.reg}, {(o - s.adj) & 0xffffffff}, v{s.reg}"); s.adj = o
        return o - s.adj
def w_addr():
    a(f"""v_lshrrev_b32 v{vT0}, 2, v{vL}
s_lshl_b32 s{sA}, s{sTT}, 4
v_add_u32 v{vT0}, s{sA}, v{vT0}
v_and_b32 v{vT1}, 3, v{vL}
s_lshl_b32 s{sA}, s{sHP}, 6
v_mul_u32_u24 v{vT0}, 3072, v{vT0}
v_lshl_add_u32 v{vT1}, v{vT1}, 4, s{sA}
v_add_u32 v{vG0}, v{vT0}, v{vT1}""")
def w1_addr(dst):
    a(f"""s_lshl_b32 s{sA}, s{sW}, 6
v_add_u32 v{vT0}, s{sA}, v{vL}
v_mul_u32_u24 v{vT1}, 43691, v{vT0}
s_mul_i32 s{sA}, s{sHP}, 192
v_lshrrev_b32 v{vT1}, 19, v{vT1}
s_movk_i32 s{sB}, 2752
v_mad_i32_i24 v{vT0}, v{vT1}, -12, v{vT0}
v_lshl_add_u32 v{vT0}, v{vT0}, 4, s{sA}
v_min_u32 v{vT0}, 2736, v{vT0}
v_mad_u32_u24 v{dst}, v{vT1}, s{sB}, v{vT0}""")

def w1_prefetch():
    st = 128 if OPT['pf'] == 1 else 64
    a(f"""s_lshr_b32 s{sA}, s2, 3
s_lshl_b32 s{sA}, s{sA}, 3
s_add_u32 s{sA}, s{sA}, s{sW}
s_mul_i32 s{sA}, s{sA}, 5504
s_lshr_b32 s{sB}, s{sHP}, 3
s_mul_i32 s{sB}, s{sB}, 1216
s_add_u32 s{sA}, s{sA}, s{sB}""")
    for r in range(2):
        offs = list(range(0, 1536, 64)) if st == 64 else ([0] + list(range(64, 1536, 128)) if r else list(range(0, 1536, 128)) + [1532])
        for o in offs:
            a(f"s_buffer_load_dword s{sCNT}, {srd(W1)}, s{sA} offset:{2752*r+o}")
def qkv_step(i, role, bx, bw, ld=()):
    ld = list(ld)
    if not OPT['late']:
        for g in ld: a(g)
        ld = []
    wo = bw.off(WSL(i), 8192); xo = bx.off(XS(i), 0)
    rb_ = 64 if role == 'Q' else 128
    def xr(s):
        a(f"ds_read_b128 {vr(16*i+4*s,4)}, v{vXA} offset:{xo}")
        a(f"v_xor_b32 v{vXA}, {32 if s%2==0 else 96}, v{vXA}")
    def wr(s):
        a(f"ds_read_b64_tr_b16 {vr(WF+4*s,2)}, v{vWA} offset:{wo+16*rb_*s}")
        a(f"ds_read_b64_tr_b16 {vr(WF+4*s+2,2)}, v{vWA} offset:{wo+16*rb_*s+4*rb_}")
    def mf(j, s):
        c = "0" if (j == 0 and s == 0) else vr(ACC,16)
        A, B = (vr(16*j+4*s,4), vr(WF+4*s,4)) if role == 'V' else (vr(WF+4*s,4), vr(16*j+4*s,4))
        a(f"v_mfma_f32_32x32x16_bf16 {vr(ACC,16)}, {A}, {B}, {c}")
    gd = role == 'Q' and OPT['gdot']
    def dots(j, s, g):
        for r in range(4): a(f"v_dot2c_f32_bf16 v{vT1 if r%2 else vG1}, v{16*j+4*s+r}, v{g+r}")
    def gr(j, s, g): a(f"ds_read_b128 {vr(g,4)}, v{vT0} offset:{128*j+32*s}")
    if OPT['pipe']:
        for s in range(4):
            if i > 0: mf(i-1, s)
            if gd and i > 0: dots(i-1, s, 16*i+4*s)
            wr(s); xr(s)
            if gd and i < 7: gr(i, s, 16*i+16+4*s)
            for _ in range((len(ld) + 3 - s)//(4 - s)): a(ld.pop(0))
        if i < 7: a("s_waitcnt lgkmcnt(0)")
        else:
            for s in range(4):
                a(f"s_waitcnt lgkmcnt({9-(2 if gd else 3)*s})")
                mf(7, s)
                if gd: gr(7, s, WF+4*s)
            if gd:
                for s in range(4):
                    a(f"s_waitcnt lgkmcnt({3-s})")
                    dots(7, s, WF+4*s)
        return
    for s in range(4):
        xr(s); wr(s)
    for s in range(4):
        a(f"s_waitcnt lgkmcnt({9-3*s})")
        mf(i, s)
        for _ in range((len(ld) + 3 - s)//(4 - s)): a(ld.pop(0))
def pack(dst, src, n):
    for j in range(n):
        a(f"v_cvt_pk_bf16_f32 v{dst+j}, v{src+2*j}, v{src+2*j+1}")
def b1_init(ct_s):
    a(f"""v_lshrrev_b32 v{vT0}, 5, v{vL}
v_lshlrev_b32 v{vT0}, 3, v{vT0}
s_lshl_b32 s{sA}, s{ct_s}, 6
s_add_u32 s{sA}, s{sA}, {B1L}
v_add_u32 v{vT0}, s{sA}, v{vT0}""")
    for q in range(4):
        a(f"ds_read_b64 {vr(WF+8+2*q,2)}, v{vT0} offset:{16*q}")
def b1_fin():
    a("s_waitcnt lgkmcnt(0)")
    for q in range(8):
        a(f"v_lshlrev_b32 v{ACC+2*q}, 16, v{WF+8+q}\nv_and_b32 v{ACC+2*q+1}, 0xffff0000, v{WF+8+q}")
def ffn1_pair(d, bw, ld=(), fill=None):
    ld = list(ld)
    if not OPT['late']:
        for g in ld: a(g)
        ld = []
    base = bw.off(W1P[d][1], 22400)
    def rd(k):
        c, s = k//4, k % 4
        o = base + 12288*c + 3072*s
        r = WF+4*(k % 4)
        a(f"ds_read_b64_tr_b16 {vr(r,2)}, v{vWA} offset:{o}\nds_read_b64_tr_b16 {vr(r+2,2)}, v{vWA} offset:{o+768}")
    for k in range(4): rd(k)
    for k in range(8):
        a(f"s_waitcnt lgkmcnt({6 if k<5 else 2*(7-k)})")
        a(f"v_mfma_f32_32x32x16_bf16 {vr(ACC,16)}, {vr(WF+4*(k%4),4)}, {vr(32*d+4*k,4)}, {vr(ACC,16)}")
        if k < 4: rd(k+4)
        for _ in range((len(ld) + 7 - k)//(8 - k)): a(ld.pop(0))
        if fill:
            for x in fill[k]: a(x)
def ffn1_epi(tmp):
    for j in range(16): a(f"v_max_f32 v{ACC+j}, 0, v{ACC+j}")
    for j in range(8): a(f"v_pk_mul_f32 {vr(ACC+2*j,2)}, {vr(ACC+2*j,2)}, {vr(ACC+2*j,2)}")
    pack(tmp, ACC, 8)
def h_store(tmp, ct_s, av):
    L = a.newlabel("hs")
    a(f"""s_mul_i32 s{sA}, s{sHP}, 3
s_add_u32 s{sA}, s{sA}, s{ct_s}
s_cmp_ge_u32 s{sA}, 43
s_cbranch_scc1 {L}
s_lshl_b32 s{sA}, s{sA}, 1
s_lshl_b32 s{sB}, s{sRB}, 2
s_add_u32 s{sB}, s{sB}, s{sTT}
s_mul_i32 s{sB}, s{sB}, 86
s_add_u32 s{sA}, s{sA}, s{sB}
s_lshl_b32 s{sA}, s{sA}, 10
s_add_u32 s{sA}, s{sA}, {HB}
v_lshlrev_b32 v{av}, 4, v{vL}
buffer_store_dwordx4 {vr(tmp,4)}, v{av}, {srd(WS)}, s{sA} offen sc1
buffer_store_dwordx4 {vr(tmp+4,4)}, v{av}, {srd(WS)}, s{sA} offen offset:1024 sc1""")
    a.label(L)
def poll(cnt_s, val_v, adr_v, target=16):
    L = a.newlabel("poll"); D = a.newlabel("polld")
    a(f"v_mov_b32 v{adr_v}, 0\ns_mov_b64 exec, 1")
    a.label(L)
    a(f"""buffer_load_dword v{val_v}, v{adr_v}, {srd(WS)}, s{cnt_s} offen sc1
s_waitcnt vmcnt(0)
v_cmp_eq_u32 vcc, {target}, v{val_v}
s_nop 0
s_cbranch_vccnz {D}""")
    spin(L, D, 1)
    a.label(D)
    a("s_mov_b64 exec, -1")
def signal(cnt_s, v0_, v1_):
    a(f"""v_mov_b32 v{v0_}, 0
v_mov_b32 v{v1_}, 1
s_mov_b64 exec, 1
buffer_atomic_add v{v1_}, v{v0_}, {srd(WS)}, s{cnt_s} offen sc1
s_mov_b64 exec, -1""")

def role_kv():
    a(f"""v_lshrrev_b32 v1, 3, v{vL}
s_lshl_b32 s{sA}, s{sRB}, 7
s_lshl_b32 s{sB}, s{sW}, 4
s_add_u32 s{sA}, s{sA}, s{sB}
v_add_u32 v4, s{sA}, v1
v_lshlrev_b32 v4, 10, v4
v_and_b32 v2, 7, v{vL}
v_lshrrev_b32 v3, 4, v{vL}
v_xor_b32 v5, v2, v3
v_lshl_add_u32 v{vG0}, v5, 4, v4
v_xor_b32 v{vG1}, 64, v{vG0}
v_add_u32 v{vG1}, 8192, v{vG1}
s_lshl_b32 s{sLD}, s{sW}, 11
s_lshl_b32 s{sD}, s{sW}, 10
s_lshl_b32 s{sA}, s{sW}, 3
v_add_u32 v1, s{sA}, v1
v_mul_u32_u24 v1, 3072, v1
v_and_b32 v3, 1, v3
v_lshlrev_b32 v3, 2, v3
v_xor_b32 v2, v2, v3
v_lshl_add_u32 v1, v2, 4, v1
s_and_b32 s{sE}, s{sHP}, 1
s_lshl_b32 s{sA}, s{sE}, 10
s_lshr_b32 s{sF}, s{sHP}, 1
s_lshl_b32 s{sB}, s{sF}, 7
s_add_u32 s{sA}, s{sA}, s{sB}
s_add_u32 s{sA}, s{sA}, 1024
v_add_u32 v{vG2}, s{sA}, v1
s_lshr_b32 s{sC}, s{sW}, 2
s_waitcnt lgkmcnt(0)""")
    stamp2(1)
    for i in range(NS-1):
        if i and OPT['ib'] >= i: a('s_barrier')
        load_x(i)
    stamp2(2)
    a(f"""v_lshrrev_b32 v1, 5, v{vL}
v_bfe_u32 v2, v{vL}, 2, 2
v_lshl_add_u32 v1, v1, 3, v2
v_lshlrev_b32 v1, 7, v1
v_bfe_u32 v2, v{vL}, 4, 1
v_lshl_add_u32 v1, v2, 5, v1
v_and_b32 v2, 3, v{vL}
v_lshl_add_u32 v1, v2, 3, v1
v_bfe_u32 v2, v{vL}, 3, 1
v_xor_b32 v2, s{sC}, v2
v_lshl_add_u32 v1, v2, 6, v1
v_add_u32 v{vWA}, 16384, v1""")
    if OPT['pf']: w1_prefetch()
    a(f"s_cmp_lg_u32 s{sE}, 0\ns_cbranch_scc1 L_roleV")
    for role in "KV":
        if role == 'V': a.label("L_roleV")
        vm = VM(); bx = Base(vXA); bw = Base(vWA, 16384)
        for i in range(NS-1): vm.add(('s', i), 3)
        for i in range(8):
            vm.wait(('s', i))
            if i == 0: stamp2(3)
            a("s_barrier")
            if i in (0,1,2,4,7): stamp2({0:4,1:6,2:7,4:8,7:9}[i])
            if i == 0: stamp(1)
            qkv_step(i, role, bx, bw, step_loads(i, vm, load_x, 3))
            if i in (0,7): stamp2(5 if i == 0 else 10)
        vm.add('kv', 3)
        stamp(2); stamp3(1)
        b1_init(sC)
        a(f"v_mov_b32 v{vG1}, 0\ns_mov_b64 exec, 1\nbuffer_load_dword v{vXA}, v{vG1}, {srd(DBG)}, 0 offen sc1\ns_mov_b64 exec, -1")
        a(f"""s_lshl_b32 s{sA}, s{sF}, 1
s_add_u32 s{sA}, s{sA}, s{sC}
s_lshl_b32 s{sA}, s{sA}, 18
s_lshl_b32 s{sB}, s{sRB}, 2
s_add_u32 s{sB}, s{sB}, s{sTT}
s_lshl_b32 s{sB}, s{sB}, 11
s_add_u32 s{sA}, s{sA}, s{sB}
s_add_u32 s{sA}, s{sA}, {KVB}""")
        if role == 'K':
            a(f"""v_and_b32 v{vG2}, 0x33, v{vL}
v_bfe_u32 v{vG1}, v{vL}, 2, 1
v_lshl_add_u32 v{vG2}, v{vG1}, 3, v{vG2}
v_bfe_u32 v{vG1}, v{vL}, 3, 1
v_lshl_add_u32 v{vG2}, v{vG1}, 2, v{vG2}
v_lshlrev_b32 v{vG2}, 4, v{vG2}
s_add_u32 s{sB}, s{sA}, 131072""")
            pack(WF, ACC, 8)
            a(f"buffer_store_dwordx4 {vr(WF,4)}, v{vG2}, {srd(WS)}, s{sA} offen sc1")
            a(f"buffer_store_dwordx4 {vr(WF+4,4)}, v{vG2}, {srd(WS)}, s{sB} offen sc1")
        else:
            a(f"""v_and_b32 v{vG2}, 15, v{vL}
v_lshlrev_b32 v{vG2}, 4, v{vG2}
v_lshrrev_b32 v{vG1}, 5, v{vL}
v_lshl_add_u32 v{vG2}, v{vG1}, 8, v{vG2}
v_bfe_u32 v{vG1}, v{vL}, 4, 1
v_lshl_add_u32 v{vG2}, v{vG1}, 17, v{vG2}
s_nop 0""")
            pack(WF, ACC, 8)
            a(f"buffer_store_dwordx4 {vr(WF,4)}, v{vG2}, {srd(WS)}, s{sA} offen offset:1024 sc1")
            a(f"buffer_store_dwordx4 {vr(WF+4,4)}, v{vG2}, {srd(WS)}, s{sA} offen offset:1536 sc1")
        if role == 'K': a("s_branch L_kvffn")
    a.label("L_kvffn")
    a(f"s_lshl_b32 s{sA}, s{sC}, 6")
    wa64(vT0, vT1, sA, 192)
    bw = Base(vWA)
    b1_fin()
    def sigcode():
        a(f"""v_mov_b32 v{vT0}, {FLG+64}
v_mov_b32 v{vT1}, 1
s_mov_b64 exec, 1
ds_add_rtn_u32 v{vT0}, v{vT0}, v{vT1}
s_waitcnt lgkmcnt(0)
v_cmp_eq_u32 vcc, 7, v{vT0}
s_nop 0
s_cbranch_vccz L_s1done""")
        a.label("L_boot")
        a(f"""v_cmp_eq_u32 vcc, 1, v{vXA}
s_nop 0
s_cbranch_vccnz L_bootok
v_mov_b32 v{vT0}, 0
buffer_load_dword v{vXA}, v{vT0}, {srd(DBG)}, 0 offen sc1
s_waitcnt vmcnt(0)""")
        spin("L_boot", "L_bootok", 1)
        a.label("L_bootok")
        a(f"s_lshl_b32 s{sA}, s{sF}, 8\nv_mov_b32 v{vT0}, 0\nbuffer_atomic_add v{vT1}, v{vT0}, {srd(WS)}, s{sA} offen sc1\ns_mov_b32 s{sE}, 2")
        a.label("L_s1done")
        a("s_mov_b64 exec, -1")
    for d in range(4):
        if OPT['fill']: ffn1_pair(d, bw, d_phase(d, vm, vG0, True, sigcode), att_fill(d))
        else: ffn1_pair(d, bw, d_phase(d, vm, vG0, True, sigcode, att_setup if d == 3 else None))
    attention()

KV = [0, 12, 24, 36]; QF = 48; OA = 64; SX, SY = 128, 144
vK, vV, vI = 160, 162, 163
def kv_load(b):
    a(f"""buffer_load_dwordx4 {vr(KV[b],4)}, v{vK}, {srd(WS)}, s{sD} offen sc1
s_mov_b64 exec, {sr(sVM,2)}
buffer_load_dwordx4 {vr(KV[b]+4,4)}, v{vV}, {srd(WS)}, s{sD} offen offset:1024 sc1
buffer_load_dwordx4 {vr(KV[b]+8,4)}, v{vV}, {srd(WS)}, s{sD} offen offset:1536 sc1
s_mov_b64 exec, -1
s_add_u32 s{sD}, s{sD}, 8192
s_and_b32 s{sD}, s{sD}, 0x1ffff""")
def qk(dst, kb, q, c="0"):
    a(f"v_mfma_f32_32x32x16_bf16 {vr(dst,16)}, {vr(KV[kb],4)}, {vr(QF+4*q,4)}, {c}")
def pv(q, kb, s, src):
    a(f"v_smfmac_f32_32x32x32_bf16 {vr(OA+16*q,16)}, {vr(KV[kb]+4+4*s,4)}, {vr(src+8*s,8)}, v{vI}")
def ex(r): a(f"v_exp_f32 v{r}, v{r}")
def q_frags():
    for j in range(4):
        a(f"""s_add_u32 s{sA}, s{sTT}, {j}
s_and_b32 s{sA}, s{sA}, 3
s_lshl_b32 s{sB}, s{sC}, 2
s_add_u32 s{sA}, s{sA}, s{sB}
s_lshl_b32 s{sA}, s{sA}, 10
s_add_u32 s{sA}, s{sA}, {QST}
v_lshl_add_u32 v{vT0}, v{vL}, 4, s{sA}
ds_read_b128 {vr(QF+4*j,4)}, v{vT0}""")
def kv_addr():
    a(f"""s_lshl_b32 s{sA}, s{sHP}, 1
s_add_u32 s{sA}, s{sA}, s{sC}
s_lshl_b32 s{sA}, s{sA}, 17
s_lshl_b32 s{sB}, s{sTT}, 11
s_add_u32 s{sA}, s{sA}, s{sB}
s_add_u32 s{sA}, s{sA}, {KVB}
v_lshl_add_u32 v{vK}, v{vL}, 4, s{sA}
v_and_b32 v{vV}, 15, v{vL}
v_lshl_add_u32 v{vV}, v{vV}, 4, s{sA}
v_lshrrev_b32 v{vT0}, 5, v{vL}
v_lshl_add_u32 v{vV}, v{vT0}, 8, v{vV}
v_mov_b32 v{vI}, 0xdddd
s_lshl_b32 s{sD}, s{sRB}, 13""")
def att_setup():
    q_frags(); kv_addr()
    for b in range(4):
        for j in range(8): a(f"v_mov_b32 v{KV[b]+4+j}, 0x3f803f80")
    for j in range(32): a(f"v_mov_b32 v{OA+j}, 0")
    a("s_waitcnt lgkmcnt(0)")
def att_fill(d):
    def spread(items, lo=0):
        out = [[] for _ in range(8)]; n = len(items)
        for j, x in enumerate(items): out[lo + j*(8-lo)//n].append(x)
        return out
    def mov2(r, val): return f"v_mov_b64 {vr(r,2)}, {val}" if val == 0 else f"v_mov_b32 v{r}, {val}\nv_mov_b32 v{r+1}, {val}"
    one = 0x3f803f80
    if d == 0: return None
    if d == 1: return spread([mov2(r, one) for r in (4,6,8,10,16,18,20,22,28,30)])
    if d == 2:
        it = [mov2(r, one) for r in (32,34,40,42,44,46)]
        n = len(a.lines); kv_addr(); ad = a.lines[n:]; del a.lines[n:]
        return spread(it + ad)
    out = spread([mov2(OA+2*j, 0) for j in range(16)])
    for k in range(1, 8): out[k] += [mov2(96+4*(k-1), 0), mov2(98+4*(k-1), 0)]
    n = len(a.lines); q_frags(); out[7] += a.lines[n:]; del a.lines[n:]
    return out
def attention():
    a(f"""s_lshl_b32 s{sA}, s{sW}, 2
s_add_u32 s{sA}, s{sA}, {FLG}
v_mov_b32 v{vG2}, s{sA}
v_mov_b32 v{vT1}, 1
s_mov_b32 s{sCNT}, 4""")
    a("s_nop 6")
    ffn1_epi(WF)
    if not OPT['hl']: h_store(WF, sC, vT0)
    a(f"""s_lshl_b32 s{sA}, s{sRB}, 2
s_add_u32 s{sA}, s{sA}, s{sTT}
s_lshl_b32 s{sA}, s{sA}, 5
s_lshl_b32 s{sB}, s{sHP}, 1
s_add_u32 s{sA}, s{sA}, s{sB}
s_add_u32 s{sA}, s{sA}, s{sC}
s_lshl_b32 s{sF}, s{sA}, 10
s_add_u32 s{sF}, s{sF}, {OB}""")
    for j in range(60 if OPT['fill'] else 32, 64, 2): a(f"v_mov_b64 {vr(OA+j,2)}, 0")
    for j in range(0, 8, 2): a(f"v_mov_b64 {vr(SY+8+j,2)}, 0")
    a("s_waitcnt lgkmcnt(0)")
    stamp(3)
    a("s_barrier")
    if OPT['aprio']: a("s_setprio 2")
    for b in range(OPT['kvi']): kv_load(b)
    stamp(4)
    a(f"s_waitcnt vmcnt({3*OPT['kvi']-3})")
    if not OPT['hl']: a(f"ds_write_b32 v{vG2}, v{vT1}")
    stamp(5); stamp3(10)
    qk(SX, 0, 0)
    for b in range(OPT['kvi'], 3): kv_load(b)
    if OPT['hl']: h_store(WF, sC, vT0)
    a("s_nop 7\ns_nop 3" if OPT['kvi'] == 3 else "s_nop 4" if OPT['kvi'] == 2 else "")
    a(".p2align 3")
    a.label("L_att")
    for kt in range(4):
        for q in range(4):
            Xr, Yr = (SX, SY) if q % 2 == 0 else (SY, SX)
            ex(Xr); ex(Xr+1)
            pv((q+3) % 4, kt if q else (kt+3) % 4, 1, Yr)
            if q == 0: kv_load((kt+3) % 4)
            for j in range(2, 5): ex(Xr+j)
            if q == 3:
                a("s_waitcnt vmcnt(6)")
                qk(Yr, (kt+1) % 4, 0)
                if kt == 1:
                    a(f"s_cmp_lg_u32 s{sCNT}, 4\ns_cbranch_scc1 L_ap1")
                    if OPT['hl']: a(f"ds_write_b32 v{vG2}, v{vT1}")
                    if OPT['aprio']: a("s_setprio 1")
                    a.label("L_ap1")
            else: qk(Yr, kt, q+1)
            for j in range(5, 10): ex(Xr+j)
            pv(q, kt, 0, Xr)
            if OPT['aprio'] and 4*kt+q == OPT['aprio']:
                a(f"s_cmp_lg_u32 s{sCNT}, 1\ns_cbranch_scc1 L_ap2\ns_setprio 0")
                a.label("L_ap2")
            if q == 3 and kt == 3: a(f"s_sub_u32 s{sCNT}, s{sCNT}, 1\ns_cmp_lg_u32 s{sCNT}, 0")
            for j in range(10, 16): ex(Xr+j)
    a("s_cbranch_scc1 L_att")
    a("s_nop 1")
    pv(3, 3, 1, SY)
    stamp(6)
    for j in range(1, 4):
        a(f"""s_add_u32 s{sA}, s{sTT}, {j}
s_and_b32 s{sA}, s{sA}, 3
s_lshl_b32 s{sB}, s{sC}, 2
s_add_u32 s{sA}, s{sA}, s{sB}
s_mul_i32 s{sA}, s{sA}, 6912
s_add_u32 s{sA}, s{sA}, {2304*(j-1)}
v_lshl_add_u32 v{SX+j}, v{vL}, 4, s{sA}
v_lshl_add_u32 v{SX+4+j}, v{vL}, 2, s{sA}""")
        if j == 3: a("s_nop 3")
    for j in range(1, 4):
        a(f"""ds_write_b128 v{SX+j}, {vr(OA+16*j,4)}
ds_write_b128 v{SX+j}, {vr(OA+16*j+4,4)} offset:1024
ds_write_b32 v{SX+4+j}, v{OA+16*j+8} offset:2048""")
    a(f"""s_mul_i32 s{sA}, s{sW}, 6912
v_lshl_add_u32 v{SX}, v{vL}, 4, s{sA}
v_lshl_add_u32 v{SX+4}, v{vL}, 2, s{sA}
v_and_b32 v{SX+8}, 31, v{vL}
s_lshl_b32 s{sA}, s{sTT}, 7
s_add_u32 s{sA}, s{sA}, {GL}
v_lshl_add_u32 v{SX+8}, v{SX+8}, 2, s{sA}
s_waitcnt lgkmcnt(0)
s_barrier""")
    stamp(7)
    P = OA+16
    for j in range(3):
        a(f"""ds_read_b128 {vr(P+16*j,4)}, v{SX} offset:{2304*j}
ds_read_b128 {vr(P+16*j+4,4)}, v{SX} offset:{2304*j+1024}
ds_read_b32 v{P+16*j+8}, v{SX+4} offset:{2304*j+2048}""")
    vg = SX+9
    a(f"ds_read_b32 v{vg}, v{SX+8}")
    a(f"v_lshlrev_b32 v{SX+10}, 4, v{vL}")
    for j in range(3):
        a(f"s_waitcnt lgkmcnt({7-3*j})")
        for r in range(9): a(f"v_add_f32 v{OA+r}, v{OA+r}, v{P+16*j+r}")
    t = SX+11
    a(f"v_mul_f32 v{t}, 0, v{OA}")
    for r in range(1, 8): a(f"v_fmac_f32 v{t}, 0, v{OA+r}")
    a(f"""v_add_f32 v{t}, v{t}, v{OA+8}
v_cmp_nle_f32 vcc, 0x2b800000, v{t}
v_cmp_nge_f32 s[{sA+1}:{sA+2}], v{t+1}, v{t}""".replace(f"v_cmp_nle", f"v_mov_b32 v{t+1}, 0x53800000\nv_cmp_nle"))
    a(f"s_nop 0\ns_or_b64 vcc, vcc, s[{sA+1}:{sA+2}]")
    a("s_cbranch_vccnz L_fb" if not OPT['forcefb'] else "s_branch L_fb")
    a.label("L_fbdone")
    a(f"v_rcp_f32 v{t}, v{OA+8}\ns_waitcnt lgkmcnt(0)\nv_mul_f32 v{t}, v{t}, v{vg}")
    for r in range(8): a(f"v_mul_f32 v{OA+r}, v{OA+r}, v{t}")
    pack(OA, OA, 4)
    for r in range(4): a(f"v_min_u32 v{OA+r}, -2, v{OA+r}")
    a(f"buffer_store_dwordx4 {vr(OA,4)}, v{SX+10}, {srd(WS)}, s{sF} offen sc1")
    R, Cc, A0, A1, A2, A3, OADR, BV, T = 16, 17, 18, 19, 20, 21, 22, 24, 32
    stamp(8)
    a(f"""v_lshrrev_b32 v{R}, 3, v{vL}
s_lshl_b32 s{sA}, s{sW}, 3
v_add_u32 v{R}, s{sA}, v{R}
v_and_b32 v{Cc}, 7, v{vL}
s_lshr_b32 s{sA}, s{sHP}, 1
s_lshl_b32 s{sA}, s{sA}, 7
v_lshl_add_u32 v{A0}, v{Cc}, 4, s{sA}
buffer_load_dwordx4 {vr(BV,4)}, v{A0}, {srd(B2)}, 0 offen
s_and_b32 s{sB}, s{sHP}, 1
s_lshl_b32 s{sB}, s{sB}, 6
v_add_u32 v{A1}, s{sB}, v{R}
v_lshlrev_b32 v{A2}, 2, v{A1}
v_add_u32 v{A2}, {GL}, v{A2}
ds_read_b32 v{vg}, v{A2}
s_lshl_b32 s{sB}, s{sRB}, 7
v_add_u32 v{A1}, s{sB}, v{A1}
v_lshl_add_u32 v{OADR}, v{A1}, 10, v{A0}
v_lshlrev_b32 v{A0}, 1, v{Cc}
v_and_b32 v{A1}, 15, v{R}
v_xor_b32 v{A0}, v{A0}, v{A1}
v_lshlrev_b32 v{A0}, 4, v{A0}
v_lshl_add_u32 v{A0}, v{R}, 8, v{A0}
v_add_u32 v{A0}, {FP[0]}, v{A0}
v_xor_b32 v{A1}, 16, v{A0}
s_waitcnt vmcnt(0) lgkmcnt(0)
v_sub_f32 v{vg}, 1.0, v{vg}""")
    for q in range(4):
        a(f"v_lshlrev_b32 v{T+2*q}, 16, v{BV+q}\nv_and_b32 v{T+2*q+1}, 0xffff0000, v{BV+q}")
    for r in range(8): a(f"v_mul_f32 v{T+r}, v{T+r}, v{vg}")
    a("s_barrier")
    stamp(9)
    for p in range(4):
        x0, x1, o = A0, A1, 16384*p
        a(f"ds_read_b128 {vr(64+8*p,4)}, v{x0} offset:{o}\nds_read_b128 {vr(68+8*p,4)}, v{x1} offset:{o}")
    for p in range(4):
        a(f"s_waitcnt lgkmcnt({6-2*p})")
        for r in range(8): a(f"v_add_f32 v{T+r}, v{T+r}, v{64+8*p+r}")
    pack(T, T, 4)
    a(f"buffer_store_dwordx4 {vr(T,4)}, v{OADR}, {srd(OUT)}, 0 offen")
    stamp(10)
    a("s_branch L_end")
    fallback()

def fallback():
    M, NC = SY, 96
    a.label("L_fb")
    a(f"""s_waitcnt vmcnt(0) lgkmcnt(0)
s_lshl_b32 s{sA}, s{sTT}, 11
v_subrev_u32 v{vK}, s{sA}, v{vK}
v_subrev_u32 v{vV}, s{sA}, v{vV}
v_mov_b32 v{M}, 0xff800000
s_mov_b32 s{sD}, 0""")
    a.label("L_fb1")
    a(f"buffer_load_dwordx4 {vr(KV[0],4)}, v{vK}, {srd(WS)}, s{sD} offen sc1\ns_waitcnt vmcnt(0)")
    qk(NC, 0, 0)
    a("s_nop 7\ns_nop 3")
    for j in range(8): a(f"v_max3_f32 v{M}, v{NC+2*j}, v{NC+2*j+1}, v{M}")
    a(f"s_add_u32 s{sD}, s{sD}, 2048\ns_cmp_lg_u32 s{sD}, 131072\ns_cbranch_scc1 L_fb1")
    a(f"""v_mov_b32 v{M+1}, v{M}
s_nop 1
v_permlane32_swap_b32 v{M}, v{M+1}
s_nop 1
v_max_f32 v{M}, v{M}, v{M+1}""")
    for j in range(16): a(f"v_sub_f32 v{112+j}, 0, v{M}\nv_mov_b32 v{OA+j}, 0")
    a(f"s_mov_b32 s{sD}, 0")
    a.label("L_fb2")
    a(f"""buffer_load_dwordx4 {vr(KV[0],4)}, v{vK}, {srd(WS)}, s{sD} offen sc1
s_mov_b64 exec, {sr(sVM,2)}
buffer_load_dwordx4 {vr(KV[0]+4,4)}, v{vV}, {srd(WS)}, s{sD} offen offset:1024 sc1
buffer_load_dwordx4 {vr(KV[0]+8,4)}, v{vV}, {srd(WS)}, s{sD} offen offset:1536 sc1
s_mov_b64 exec, -1
s_waitcnt vmcnt(0)""")
    qk(NC, 0, 0, vr(112,16))
    a("s_nop 7\ns_nop 3")
    for j in range(16): ex(NC+j)
    a("s_nop 1")
    pv(0, 0, 0, NC); pv(0, 0, 1, NC)
    a(f"s_add_u32 s{sD}, s{sD}, 2048\ns_cmp_lg_u32 s{sD}, 131072\ns_cbranch_scc1 L_fb2")
    a("s_nop 7\ns_nop 3\ns_branch L_fbdone")

def role_q_head():
    w_addr()
    a(f"""s_lshl_b32 s{sLD}, s{sTT}, 10
s_lshl_b32 s{sD}, s{sW}, 10
s_mov_b32 s{sC}, 2""")
    a(f"""v_lshlrev_b32 v1, 2, v{vL}
v_add_u32 v2, {FLG}, v1
v_mov_b32 v3, 0
s_lshl_b32 s{sA}, s{sST}, 7
v_lshl_add_u32 v4, v{vL}, 4, s{sA}
v_and_b32 v4, 1023, v4
s_mul_i32 s{sA}, s{sHP}, 192
v_add_u32 v5, s{sA}, v1
v_lshlrev_b32 v6, 8, v{vL}
s_waitcnt lgkmcnt(0)""")
    stamp2(1)
    a(f"""s_cmp_lg_u32 s{sW}, 11
s_cbranch_scc1 L_q1
s_cmp_lg_u32 s2, 0
s_cbranch_scc1 L_q0
s_mov_b64 exec, 0xffffffffffff
buffer_store_dword v3, v6, {srd(WS)}, 0 offen sc1
s_mov_b64 exec, -1""".replace("s_mov_b64 exec, 0xffffffffffff", "s_mov_b32 exec_hi, 0"))
    a.label("L_q0")
    a(f"""ds_write_b32 v2, v3
s_mov_b32 m0, {GWL}
s_nop 0
buffer_load_dwordx4 v4, {srd(GW)}, 0 offen lds
s_mov_b32 m0, {B1L}
s_nop 0
buffer_load_dword v5, {srd(B1)}, 0 offen lds""")
    a.label("L_q1")
    for i in range(NS-1):
        if i and OPT['ib'] >= i: a('s_barrier')
        load_wq(i)
    if OPT['qp']: a('s_branch L_roleQ')
def role_q():
    a.label("L_roleQ")
    if not OPT['qp']: role_q_head()
    w1_addr(vG2)
    stamp2(2)
    a(f"s_mov_b32 s{sA}, {16384+8192}")
    wa64(1, 2, sA)
    if OPT['gdot']:
        a(f"v_lshrrev_b32 v{vT0}, 5, v{vL}\nv_lshlrev_b32 v{vT0}, 4, v{vT0}\nv_add_u32 v{vT0}, {GWL}, v{vT0}\nv_mov_b32 v{vT1}, 0\nv_mov_b32 v{vG1}, 0")
    vm = VM(); bx = Base(vXA); bw = Base(vWA, 16384)
    for i in range(NS-1): vm.add(('s', i))
    for i in range(8):
        vm.wait(('s', i))
        if i == 0:
            a(f"""s_cmp_lg_u32 s{sW}, 11
s_cbranch_scc1 L_q2
s_cmp_lg_u32 s2, 0
s_cbranch_scc1 L_q2
v_mov_b32 v4, 1
s_mov_b64 exec, 1
buffer_store_dword v4, v3, {srd(DBG)}, 0 offen sc1
s_mov_b64 exec, -1""")
            a.label("L_q2")
        if i == 0: stamp2(3)
        a("s_barrier")
        if i in (0,1,2,4,7): stamp2({0:4,1:6,2:7,4:8,7:9}[i])
        if i == 0: stamp(1)
        ld = step_loads(i, vm, load_wq, 1, vG2)
        if i == OPT['clr']:
            assert not OPT['gdot'] and i < 6
            ld.append(f"""s_lshl_b32 s{sA}, s{sRB}, 2
s_add_u32 s{sA}, s{sA}, s{sTT}
s_lshl_b32 s{sA}, s{sA}, 4
s_add_u32 s{sA}, s{sA}, s{sHP}
s_lshl_b32 s{sA}, s{sA}, 11
s_add_u32 s{sA}, s{sA}, {OB}
v_lshlrev_b32 v116, 4, v{vL}
v_mov_b64 v[112:113], -1
v_mov_b64 v[114:115], -1
buffer_store_dwordx4 v[112:115], v116, {srd(WS)}, s{sA} offen sc1
buffer_store_dwordx4 v[112:115], v116, {srd(WS)}, s{sA} offen offset:1024 sc1""")
            vm.add('clr', 2)
        qkv_step(i, 'Q', bx, bw, ld)
        if i in (0,7): stamp2(5 if i == 0 else 10)
    stamp(2); stamp3(1)
    if OPT['qb']:
        assert OPT['sg0'] or OPT['sig'] > 0
        vm.wait(('w', 0)); a("s_barrier")
    if OPT['gdot']: a(f"s_nop 2\nv_add_f32 v{vG1}, v{vG1}, v{vT1}")
    b1_init(sC)
    if OPT['gdot']:
        a(f"v_mov_b32 v{vG0}, v{vG1}\ns_nop 1\nv_permlane32_swap_b32 v{vG0}, v{vG1}\ns_nop 1\nv_add_f32 v{vG1}, v{vG0}, v{vG1}")
        sigmoid(vG1)
    a(f"""s_lshl_b32 s{sA}, s{sTT}, 10
s_add_u32 s{sA}, s{sA}, {QST}
v_lshl_add_u32 v{vXA}, v{vL}, 4, s{sA}
s_mov_b32 s{sA}, {QSC}
s_nop 1""")
    for j in range(16): a(f"v_mul_f32 v{ACC+j}, s{sA}, v{ACC+j}")
    pack(WF, ACC, 8)
    a(f"ds_write_b128 v{vXA}, {vr(WF,4)}\nds_write_b128 v{vXA}, {vr(WF+4,4)} offset:4096")
    a(f"s_movk_i32 s{sA}, 128")
    wa64(vT0, vT1, sA, 192)
    bw = Base(vWA)
    b1_fin()
    for d in range(4):
        ffn1_pair(d, bw, d_phase(d, vm, vG2, False, None))
    gemm()

GA = 0
HF = [64, 72, 80, 88]
WR = 96
vH, vWa, vWb, vR0, vR1 = 160, 161, 162, 163, 164
def sigmoid(r):
    a(f"""v_mul_f32 v{r}, 0xbfb8aa3b, v{r}
v_exp_f32 v{r}, v{r}
v_and_b32 v{vT0}, 31, v{vL}
v_add_f32 v{r}, 1.0, v{r}
v_rcp_f32 v{r}, v{r}
s_lshl_b32 s{sA}, s{sTT}, 7
s_add_u32 s{sA}, s{sA}, {GL}
v_lshl_add_u32 v{vT0}, v{vT0}, 2, s{sA}
ds_write_b32 v{vT0}, v{r}""")
def gate():
    a(f"v_lshrrev_b32 v{vT0}, 5, v{vL}\nv_lshlrev_b32 v{vT0}, 4, v{vT0}\nv_add_u32 v{vT0}, {GWL}, v{vT0}")
    G4 = [152, 156, 144, 148]
    for k in range(4): a(f"ds_read_b128 {vr(G4[k],4)}, v{vT0} offset:{32*k}")
    for k in range(32):
        a(f"s_waitcnt lgkmcnt({min(3,31-k)})")
        a(f"v_mfma_f32_32x32x16_bf16 {vr(ACC,16)}, {vr(G4[k%4],4)}, {vr(4*k,4)}, {'0' if k==0 else vr(ACC,16)}")
        if k < 28: a(f"ds_read_b128 {vr(G4[k%4],4)}, v{vT0} offset:{32*(k+4)}")
def s1_pre():
    a(f"""s_cmp_lg_u32 s{sW}, 8
s_cbranch_scc1 L_e0
s_lshr_b32 s{sD}, s{sHP}, 1
s_lshl_b32 s{sD}, s{sD}, 8
v_mov_b32 v{vR1}, 0
s_mov_b64 exec, 1
buffer_load_dword v{vR0}, v{vR1}, {srd(WS)}, s{sD} offen sc1
s_mov_b64 exec, -1""")
    a.label("L_e0")
def s1_wait():
    a(f"s_cmp_lg_u32 s{sW}, 8\ns_cbranch_scc1 L_e")
    stamp3(10)
    a(f"s_mov_b64 exec, 1\ns_waitcnt vmcnt(0)\nv_cmp_eq_u32 vcc, 32, v{vR0}\ns_mov_b64 exec, -1\ns_cbranch_vccnz L_e")
    poll(sD, vT0, vT1, 32)
    a.label("L_e")
    stamp(3)
    a("s_barrier")
    a(f"s_setprio {OPT['prio']}")
def gemm():
    s1_pre()
    a(f"""v_lshrrev_b32 v{vT0}, 3, v{vL}
v_lshlrev_b32 v{vT0}, 10, v{vT0}
v_bfe_u32 v{vT1}, v{vL}, 4, 1
v_lshlrev_b32 v{vT1}, 2, v{vT1}
v_and_b32 v{vWa}, 7, v{vL}
v_xor_b32 v{vWa}, v{vWa}, v{vT1}
v_lshl_add_u32 v{vWa}, v{vWa}, 4, v{vT0}
s_lshr_b32 s{sA}, s{sHP}, 1
s_lshl_b32 s{sA}, s{sA}, 7
v_add_u32 v{vWa}, s{sA}, v{vWa}
v_add_u32 v{vWb}, 8192, v{vWa}
s_nop 0""")
    ffn1_epi(WF)
    s1_wait()
    h_store(WF, sC, vT0)
    if not OPT['gdot'] and OPT['gpre'] != 2: gate()
    if not OPT['gdot'] and OPT['gpre'] != 2:
        a("s_nop 7\ns_nop 3"); sigmoid(ACC)
    a(f"""s_lshl_b32 s{sA}, s{sW}, 2
s_add_u32 s{sA}, s{sA}, {FLG}
v_mov_b32 v{vT0}, s{sA}
v_mov_b32 v{vT1}, 1
s_waitcnt vmcnt(0)
ds_write_b32 v{vT0}, v{vT1}""")
    a(f"""v_lshrrev_b32 v{vT0}, 5, v{vL}
v_bfe_u32 v{vT1}, v{vL}, 2, 2
v_lshl_add_u32 v{vT0}, v{vT0}, 2, v{vT1}
v_lshlrev_b32 v{vT0}, 7, v{vT0}
v_bfe_u32 v{vT1}, v{vL}, 4, 1
v_lshl_add_u32 v{vT0}, v{vT1}, 5, v{vT0}
v_and_b32 v{vT1}, 3, v{vL}
v_lshl_add_u32 v{vT0}, v{vT1}, 3, v{vT0}
v_bfe_u32 v{vT1}, v{vL}, 3, 1
v_lshl_add_u32 v{vT0}, v{vT1}, 6, v{vT0}
s_lshl_b32 s{sLD}, s{sTT}, 13
s_add_u32 s{sLD}, s{sLD}, {RING}
v_add_u32 v{vR0}, s{sLD}, v{vT0}
v_xor_b32 v{vR1}, 64, v{vR0}""")
    if OPT['gdot'] or OPT['gpre'] != 2:
        for j in range(0, 64, 2): a(f"v_mov_b64 {vr(GA+j,2)}, 0")
    a(f"""s_mul_i32 s{sD}, s{sTT}, 22
s_cmp_eq_u32 s{sTT}, 3
s_subb_u32 s{sD}, s{sD}, 0
s_lshr_b32 s{sA}, s{sTT}, 1
s_sub_u32 s{sCNT}, 22, s{sA}
s_add_u32 s{sE}, s{sD}, s{sCNT}
s_sub_u32 s{sE}, s{sE}, 1
s_lshl_b32 s{sA}, s{sRB}, 2
s_and_b32 s{sB}, s{sHP}, 1
s_lshl_b32 s{sB}, s{sB}, 1
s_add_u32 s{sF}, s{sA}, s{sB}
s_mul_i32 s{sA}, s{sF}, {86*1024}
s_add_u32 s{sA}, s{sA}, {HB}
v_lshl_add_u32 v{vH}, v{vL}, 4, s{sA}""")
    a(f"s_lshl_b32 s{sC}, s{sRB}, 8\ns_add_u32 s{sC}, s{sC}, 4096")
    a(f"s_cmp_lg_u32 s{sW}, 8\ns_cbranch_scc1 L_s2done")
    a(f"v_lshlrev_b32 v{vT0}, 2, v{vL}\nv_add_u32 v{vT0}, {FLG}, v{vT0}\ns_mov_b64 exec, 0xfff")
    a.label("L_flg")
    a(f"""ds_read_b32 v{vT1}, v{vT0}
s_waitcnt lgkmcnt(0)
v_cmp_ne_u32 vcc, 1, v{vT1}
s_nop 0
s_cbranch_vccz L_flgok""")
    spin("L_flg", "L_flgok", 4)
    a.label("L_flgok")
    a("s_mov_b64 exec, -1")
    signal(sC, vT0, vT1)
    a.label("L_s2done")
    a(f"s_setprio {OPT['prio2']}")
    a(f"s_lshl_b32 s{sA}, s{sTT}, 17\ns_lshl_b32 s{sB}, s{sTT}, 14\ns_add_u32 s{sB}, s{sB}, {WOL}")
    for n in range(8):
        a(f"""s_add_u32 m0, s{sB}, {2048*n}
s_nop 0
buffer_load_dwordx4 v{vWa}, {srd(WO)}, s{sA} offen lds
s_add_u32 m0, s{sB}, {2048*n+1024}
s_nop 0
buffer_load_dwordx4 v{vWb}, {srd(WO)}, s{sA} offen lds
s_add_u32 s{sA}, s{sA}, 16384""")
    if not OPT['gdot'] and OPT['gpre'] == 2:
        gate()
        for j in range(64): a(f"v_mov_b32 v{GA+j}, 0")
        sigmoid(ACC)
    stamp(4)
    poll(sC, vT0, vT1)
    stamp(5)
    def issue(st):
        a(f"""s_lshl_b32 s{sA}, s{sD}, 14
s_add_u32 m0, s{sLD}, {2048*st}
s_lshl_b32 s{sB}, s{sD}, 10
buffer_load_dwordx4 v{vWa}, {srd(W2)}, s{sA} offen lds
s_add_u32 m0, s{sLD}, {2048*st+1024}
buffer_load_dwordx4 {vr(HF[st],4)}, v{vH}, {srd(WS)}, s{sB} offen sc1
buffer_load_dwordx4 v{vWb}, {srd(W2)}, s{sA} offen lds
s_add_u32 s{sB}, s{sB}, {86*1024}
s_add_u32 s{sD}, s{sD}, 1
buffer_load_dwordx4 {vr(HF[st]+4,4)}, v{vH}, {srd(WS)}, s{sB} offen sc1
s_min_u32 s{sD}, s{sD}, s{sE}""")
    def wread(r, o):
        a(f"""ds_read_b64_tr_b16 {vr(r,2)}, v{vR0} offset:{o}
ds_read_b64_tr_b16 {vr(r+2,2)}, v{vR0} offset:{o+1024}
ds_read_b64_tr_b16 {vr(r+4,2)}, v{vR1} offset:{o}
ds_read_b64_tr_b16 {vr(r+6,2)}, v{vR1} offset:{o+1024}""")
    def mm(tt, ct, w, h):
        g = vr(GA+32*tt+16*ct, 16)
        a(f"v_mfma_f32_32x32x16_bf16 {g}, {vr(w+4*ct,4)}, {vr(h+4*tt,4)}, {g}")
    if OPT['nof2']: a("s_branch L_f2done")
    for st in range(4): issue(st)
    a.label("L_f2")
    for st in range(4):
        a("s_waitcnt vmcnt(12)")
        if OPT['f2s']:
            o = 2048*st
            a(f"ds_read_b64_tr_b16 {vr(WR,2)}, v{vR0} offset:{o}\nds_read_b64_tr_b16 {vr(WR+2,2)}, v{vR0} offset:{o+1024}\ns_waitcnt lgkmcnt(0)")
            mm(0, 0, WR, HF[st])
            a(f"ds_read_b64_tr_b16 {vr(WR+4,2)}, v{vR1} offset:{o}\ns_waitcnt lgkmcnt(0)")
            mm(1, 0, WR, HF[st])
            a(f"ds_read_b64_tr_b16 {vr(WR+6,2)}, v{vR1} offset:{o+1024}\ns_waitcnt lgkmcnt(0)")
            mm(0, 1, WR, HF[st])
            a(f"s_sub_u32 s{sCNT}, s{sCNT}, 1\ns_cmp_eq_u32 s{sCNT}, 0\ns_cbranch_scc1 L_f2x{st}")
            g = capture(issue, st)
            a(g[0]); a(g[1]); a(g[2])
            mm(1, 1, WR, HF[st])
            for x in g[3:]: a(x)
            continue
        wread(WR, 2048*st)
        a("s_waitcnt lgkmcnt(2)")
        mm(0, 0, WR, HF[st]); mm(1, 0, WR, HF[st])
        a("s_waitcnt lgkmcnt(0)")
        mm(0, 1, WR, HF[st]); mm(1, 1, WR, HF[st])
        a(f"s_sub_u32 s{sCNT}, s{sCNT}, 1\ns_cmp_eq_u32 s{sCNT}, 0\ns_cbranch_scc1 L_f2done")
        issue(st)
    a("s_branch L_f2")
    if OPT['f2s']:
        for st in range(4):
            a.label(f"L_f2x{st}")
            mm(1, 1, WR, HF[st])
            if st < 3: a("s_branch L_f2done")
    a.label("L_f2done")
    stamp(6)
    a(f"""s_lshl_b32 s{sA}, s{sTT}, 14
s_add_u32 s{sA}, s{sA}, {WOL}
s_sub_u32 s{sA}, s{sA}, s{sLD}
v_add_u32 v{vR0}, s{sA}, v{vR0}
v_add_u32 v{vR1}, s{sA}, v{vR1}
s_lshl_b32 s{sA}, s{sF}, 15
s_lshl_b32 s{sB}, s{sTT}, 13
s_add_u32 s{sA}, s{sA}, s{sB}
s_add_u32 s{sA}, s{sA}, {OB}
s_waitcnt vmcnt(0)
v_lshl_add_u32 v{vH}, v{vL}, 4, s{sA}
v_and_b32 v65, 7, v{vL}
v_lshl_add_u32 v65, v65, 10, s{sA}
v_bfe_u32 v{vT0}, v{vL}, 3, 1
v_lshl_add_u32 v65, v{vT0}, 15, v65
v_and_b32 v{vT0}, 31, v{vL}
s_and_b32 s{sB}, s{sHP}, 1
s_lshl_b32 s{sB}, s{sB}, 8
s_add_u32 s{sB}, s{sB}, {GL}
v_lshl_add_u32 v{vWb}, v{vT0}, 2, s{sB}
v_lshrrev_b32 v{vT1}, 5, v{vL}
v_and_b32 v{vWa}, 15, v{vL}
v_xor_b32 v{vWa}, v{vWa}, v{vT1}
v_lshlrev_b32 v{vWa}, 4, v{vWa}
v_lshl_add_u32 v{vWa}, v{vT0}, 8, v{vWa}
s_lshl_b32 s{sA}, s{sTT}, 14
s_add_u32 s{sA}, s{sA}, {FP[0]}
v_add_u32 v{vWa}, s{sA}, v{vWa}
s_waitcnt vmcnt(0)""")
    W8 = 128
    for k in range(4): wread(W8+8*k, 2048*k)
    a(f"""s_mov_b32 s{sB}, 4096
s_mov_b32 s{sC}, 32768
s_mov_b32 s{sD}, {32768+4096}
s_mov_b32 s{sE}, 0
s_barrier""")
    stamp(7)
    OF = 64
    def oload(k):
        a(f"buffer_load_dwordx4 {vr(OF+8*k,4)}, v{vH}, {srd(WS)}, {'0' if k < 4 else 's%d'%sB} offen offset:{1024*(k%4)} sc1")
        a(f"buffer_load_dwordx4 {vr(OF+8*k+4,4)}, v{vH}, {srd(WS)}, s{sC if k < 4 else sD} offen offset:{1024*(k%4)} sc1")
    def ocheck(k):
        r = OF+8*k
        a(f"""v_max3_u32 v{vT0}, v{r}, v{r+1}, v{r+2}
v_max3_u32 v{vT1}, v{r+3}, v{r+4}, v{r+5}
v_max3_u32 v{vT0}, v{r+6}, v{r+7}, v{vT0}
v_max_u32 v{vT0}, v{vT0}, v{vT1}
v_cmp_eq_u32 vcc, -1, v{vT0}""")
    def omm(k):
        w = W8+8*(k % 4)
        mm(0, 0, w, OF+8*k); mm(1, 0, w, OF+8*k); mm(0, 1, w, OF+8*k); mm(1, 1, w, OF+8*k)
    if OPT['prio3'] >= 0: a(f"s_setprio {OPT['prio3']}")
    a(f"""s_mov_b64 exec, 0xffff
buffer_load_dword v{OF}, v{OF+1}, {srd(WS)}, 0 offen sc1
s_mov_b64 exec, -1
ds_read_b32 v{vT0}, v{vWb}
ds_read_b32 v{vWb}, v{vWb} offset:128
s_waitcnt lgkmcnt(0)
v_sub_f32 v{vT0}, 1.0, v{vT0}
v_sub_f32 v{vWb}, 1.0, v{vWb}""")
    for j in range(0, 64, 2):
        g = vT0 if j < 32 else vWb
        a(f"v_pk_mul_f32 {vr(GA+j,2)}, {vr(GA+j,2)}, {vr(g,2)} op_sel_hi:[1,0]")
    a("s_mov_b64 exec, 0xffff")
    a.label("L_opoll")
    a(f"s_waitcnt vmcnt(0)\nv_cmp_eq_u32 vcc, -1, v{OF}\ns_nop 0\ns_cbranch_vccz L_ordy")
    if OPT['bound']: a("s_add_u32 s63, s63, 1\ns_cmp_gt_u32 s63, 100000\ns_cbranch_scc1 L_ordy")
    if OPT['slp']: a(f"s_sleep {OPT['slp']}")
    a(f"buffer_load_dword v{OF}, v{OF+1}, {srd(WS)}, 0 offen sc1\ns_branch L_opoll")
    a.label("L_ordy")
    a("s_mov_b64 exec, -1")
    stamp(8)
    for k in range(8): oload(k)
    for k in range(8):
        a(f"s_waitcnt vmcnt({14-2*k})" + (f" lgkmcnt({min(12,4*(7-k))})" if k >= 4 else ""))
        ocheck(k)
        a(f"s_bitset1_b32 s{sE}, {k}\ns_cbranch_vccnz L_op{k}\ns_bitset0_b32 s{sE}, {k}")
        omm(k)
        a.label(f"L_op{k}")
        if k < 4: wread(W8+8*k, 2048*(k+4))
    a.label("L_orep")
    a(f"s_cmp_eq_u32 s{sE}, 0\ns_cbranch_scc1 L_odone")
    if OPT['bound']: a("s_add_u32 s63, s63, 1\ns_cmp_gt_u32 s63, 100000\ns_cbranch_scc1 L_odone")
    if OPT['slp']: a(f"s_sleep {OPT['slp']}")
    for k in range(8):
        a(f"s_bitcmp1_b32 s{sE}, {k}\ns_cbranch_scc0 L_oi{k}")
        oload(k)
        a.label(f"L_oi{k}")
    a("s_waitcnt vmcnt(0)")
    for k in range(8):
        a(f"s_bitcmp1_b32 s{sE}, {k}\ns_cbranch_scc0 L_oq{k}")
        wread(W8+8*(k % 4), 2048*k)
        ocheck(k)
        a(f"s_nop 0\ns_cbranch_vccnz L_oq{k}\ns_bitset0_b32 s{sE}, {k}\ns_waitcnt lgkmcnt(0)")
        omm(k)
        a.label(f"L_oq{k}")
    a("s_branch L_orep")
    a.label("L_odone")
    stamp(9)
    for ct in range(2):
        for q in range(4):
            a(f"v_xor_b32 v{64+4*ct+q}, {(8*ct+2*q)*16}, v{vWa}")
    a("s_nop 1")
    for ct in range(2):
        for tt in range(2):
            for q in range(4):
                a(f"ds_write_b128 v{64+4*ct+q}, {vr(GA+32*tt+16*ct+4*q,4)} offset:{8192*tt}")
    a("s_waitcnt lgkmcnt(0)\ns_barrier")
    stamp(10)

def epilogue():
    a.label("L_end")
    if OPT['prof']:
        a(f"s_memtime {sr(sPR+22,2)}\ns_memrealtime {sr(sPR+26,2)}\ns_waitcnt lgkmcnt(0)")
        for i in range(14): a(f"v_writelane_b32 v1, s{sPR+2*i}, {i}")
        a(f"""s_mul_i32 s{sA}, s2, 12
s_add_u32 s{sA}, s{sA}, s{sW}
s_lshl_b32 s{sA}, s{sA}, 6
s_add_u32 s{sA}, s{sA}, {PRB}
v_lshlrev_b32 v2, 2, v{vL}
s_mov_b64 exec, 0x3fff
buffer_store_dword v1, v2, {srd(WS)}, s{sA} offen""")
    a.label("L_exit")
    a("s_endpgm")

prologue(); role_kv(); role_q(); epilogue()
probs = check(a.lines)
for p in probs: print(p, file=sys.stderr)
hdr = f"""; fused gate / QKV / attention / FFN / output kernel (generated by gen/gen.py)
; @launch grid=(256,1,1) block=(768,1,1) lds=163840
.amdgcn_target "amdgcn-amd-amdhsa--gfx950"
.text
.globl {NAME}_kernel
.p2align 8
.type {NAME}_kernel,@function
{NAME}_kernel:
"""
ftr = f""".section .rodata,"a"
.p2align 6
.amdhsa_kernel {NAME}_kernel
  .amdhsa_next_free_vgpr 168
  .amdhsa_next_free_sgpr 102
  .amdhsa_accum_offset 168
  .amdhsa_group_segment_fixed_size 0
  .amdhsa_kernarg_size 96
  .amdhsa_user_sgpr_count 2
  .amdhsa_user_sgpr_kernarg_segment_ptr 1
  .amdhsa_system_sgpr_workgroup_id_x 1
.end_amdhsa_kernel
"""
open(sys.argv[1], "w").write(hdr + a.text() + ftr)
```

```python
import sys, os
sys.path.insert(0, os.path.dirname(os.path.abspath(__file__)))
from asmlib import Asm, vr, sr, check
NAME = "gated_mix__softmax_full_mha__dense_activation_squared_relu__prompt"
OPT = dict(prof=0, prio=3, forcefb=0, bound=0, map=0, aprio=8, rot=10, late=1, pipe=1, nof2=0, f2s=1, ns=3, sig=1, gpre=0, prio2=1, w1s=0, hl=0, gdot=0, w1p=6788, kvi=1, m23=1, sg0=1, qb=1, fill=1, pf=0, ib=1, qp=1, slp=1, prio3=0, clr=2, cpf=0)
for a_ in sys.argv[2:]:
    k, v = a_.split("="); OPT[k] = int(v)

X, WQKV, W1, W2, WO, B1, B2, GW, OUT, DBG, WS = 4, 8, 12, 16, 20, 24, 28, 32, 36, 40, 44
sW, sHP, sRB, sST, sTT = 48, 49, 50, 51, 52
sA, sB, sC, sD, sE, sF = 53, 54, 55, 56, 57, 58
sLD = 59
sVM = 60
sCNT = 62
sPR = 64
KVB, HB, OB, PRB = 1 << 20, 8 << 20, 16 << 20, 32 << 20
NS = OPT['ns']; SL = 28672
def XS(i): return SL*(i % NS)
def WSL(i): return SL*(i % NS) + 16384
W1P = {5: [(4, 3*SL), (5, 4*SL), (6, 0), (7, SL)], 4: [(5, 4*SL), (5, 0), (6, SL), (7, 2*SL)],
       3: [(6, 3*SL), (6, 4*SL), (6, 2*SL), (7, 0)]}[NS]
W1P = [(max(st, int(str(OPT['w1p'])[d])), b) for d, (st, b) in enumerate(W1P)]
assert OPT['sg0'] or max(st for st, b in W1P) - 8 < OPT['sig']
WOL = 55296
RING = 120832
QST = 153600
GWL = 161792
B1L = 162816
GL = 163072
FLG = 163584
FP = [WOL+16384*p for p in range(4)]
ACC, WF, vXA, vWA, vG0, vG1, vG2, vL, vT0, vT1 = 128, 144, 160, 161, 162, 163, 164, 165, 166, 167
QSC = 0x3eb8aa3b

a = Asm()
NL = chr(10)
nstamp = [0]
def stamp2(i):
    if OPT['prof'] == 2: a(f"s_memtime {sr(sPR+2*i,2)}")
def stamp3(i):
    if OPT['prof'] == 3: a(f"s_memtime {sr(sPR+2*i,2)}")
def stamp(i):
    if OPT['prof'] == 1 or (OPT['prof'] and i == 0):
        a(f"s_memtime {sr(sPR+2*i,2)}")
def srd(s): return sr(s, 4)
def spin(L, D, slp):
    if OPT['bound']:
        a(f"s_add_u32 s63, s63, 1\ns_cmp_gt_u32 s63, 100000\ns_cbranch_scc1 {D}")
    a(f"s_sleep {slp}\ns_branch {L}")

def rot8(p):
    t = f"s_add_u32 s{sA}, s{sRB}, s{sHP}{NL}s_and_b32 s{sA}, s{sA}, 3{NL}s_lshl_b32 s{sST}, s{sA}, 1"
    if p == 3: return f"s_add_u32 s{sA}, s{sRB}, s{sHP}{NL}s_and_b32 s{sA}, s{sA}, 1{NL}s_lshl_b32 s{sA}, s{sA}, 2{NL}s_and_b32 s{sB}, s2, 3{NL}s_add_u32 s{sST}, s{sA}, s{sB}"
    if p: t += f"{NL}s_bfe_u32 s{sA}, s2, {0x10002 if p == 1 else 0x10000}{NL}s_add_u32 s{sST}, s{sST}, s{sA}"
    return t
def prologue():
    a(f"s_cmp_ge_u32 s2, 256\ns_cbranch_scc1 L_exit")
    for s, off in ((X,0),(WQKV,8),(GW,64),(B1,40),(WS,88),(W1,32),(DBG,80),(WO,16),(W2,48),(B2,56),(OUT,72)):
        a(f"s_load_dwordx2 {sr(s,2)}, s[0:1], {off}")
    if OPT['cpf']:
        G = OPT['cpf']
        a("s_getpc_b64 s[96:97]")
        a.label("L_pc0")
        a(f"""v_cmp_gt_u32 vcc, 64, v0
s_bfe_u32 s98, s2, {3 | (G << 16)}
s_cbranch_vccz L_nopf
v_lshlrev_b32 v145, {G}, v0
v_add_u32 v145, s98, v145
v_lshlrev_b32 v145, 7, v145
v_min_u32 v145, L_end-L_pc0, v145
global_load_dword v144, v145, s[96:97]""")
        a.label("L_nopf")
    stamp(0)
    if OPT['prof']: a(f"s_memrealtime {sr(sPR+24,2)}")
    a(f"v_lshrrev_b32 v1, 6, v0\nv_and_b32 v{vL}, 63, v0")
    for s, sz in ((X,2097152),(WQKV,1572864),(W1,1409024),(W2,1409024),(WO,524288),(B1,2752),(B2,1024),(GW,1024),(OUT,2097152),(DBG,256),(WS,268435456)):
        a(f"s_mov_b32 s{s+2}, {sz}\ns_mov_b32 s{s+3}, 0x20000")
    a(f"v_readfirstlane_b32 s{sW}, v1")
    a(f"""s_and_b32 s{sA}, s2, 3
s_lshl_b32 s{sA}, s{sA}, 2
s_bfe_u32 s{sB}, s2, 0x20003
s_add_u32 s{sRB}, s{sA}, s{sB}
s_bfe_u32 s{sA}, s2, 0x10002
s_lshr_b32 s{sB}, s2, 5
s_lshl_b32 s{sB if OPT['map'] else sA}, s{sB if OPT['map'] else sA}, {1 if OPT['map'] else 3}
s_add_u32 s{sHP}, s{sA}, s{sB}
{["s_mov_b32 s%d, 0"%sST, "s_and_b32 s%d, s%d, 7"%(sST,sHP), "s_and_b32 s%d, s%d, 6"%(sST,sHP),
"s_lshl_b32 s%d, s%d, 1"%(sA,sRB)+NL+"s_add_u32 s%d, s%d, s%d"%(sA,sA,sHP)+NL+"s_and_b32 s%d, s%d, 7"%(sST,sA),
"s_lshl_b32 s%d, s%d, 1"%(sA,sRB)+NL+"s_and_b32 s%d, s%d, 7"%(sST,sA), "s_and_b32 s%d, s%d, 4"%(sST,sHP), "s_and_b32 s%d, s2, 7"%sST,
"s_lshr_b32 s%d, s2, 3"%sA+NL+"s_and_b32 s%d, s%d, 1"%(sA,sA)+NL+"s_lshl_b32 s%d, s%d, 2"%(sA,sA)+NL+"s_add_u32 s%d, s%d, s2"%(sA,sA)+NL+"s_and_b32 s%d, s%d, 7"%(sST,sA),
rot8(0), rot8(1), rot8(2), rot8(3)][OPT['rot']]}
s_and_b32 s{sTT}, s{sW}, 3
s_mov_b32 s{sVM}, 0xffff
s_mov_b32 s{sVM+1}, 0xffff""")
    if OPT['bound']: a("s_mov_b32 s63, 0")
    a(f"""v_and_b32 v1, 31, v{vL}
v_lshrrev_b32 v2, 5, v{vL}
v_bfe_u32 v3, v{vL}, 1, 3
v_xor_b32 v3, v3, v2
v_lshlrev_b32 v3, 4, v3
v_lshl_add_u32 v3, v1, 7, v3
s_lshl_b32 s{sA}, s{sTT}, 12
v_add_u32 v{vXA}, s{sA}, v3""")
    if OPT['qp']:
        a(f"s_cmp_lt_u32 s{sW}, 8\ns_cbranch_scc1 L_roleKV")
        role_q_head()
        a.label("L_roleKV")
    else: a(f"s_cmp_ge_u32 s{sW}, 8\ns_cbranch_scc1 L_roleQ")
def wa64(t0, t1, base_s, stride=64):
    a(f"""v_lshrrev_b32 v{t0}, 5, v{vL}
v_bfe_u32 v{t1}, v{vL}, 2, 2
v_lshl_add_u32 v{t0}, v{t0}, 3, v{t1}
v_mul_u32_u24 v{t0}, {stride}, v{t0}
v_add_u32 v{t0}, s{base_s}, v{t0}
v_bfe_u32 v{t1}, v{vL}, 4, 1
v_lshl_add_u32 v{t0}, v{t1}, 5, v{t0}
v_and_b32 v{t1}, 3, v{vL}
v_lshl_add_u32 v{vWA}, v{t1}, 3, v{t0}""")

def chunk_off(dst, i, mul):
    a(f"s_add_u32 s{dst}, s{sST}, {i}\ns_and_b32 s{dst}, s{dst}, 7\ns_mul_i32 s{dst}, s{dst}, {mul}")
def capture(f, *args):
    n = len(a.lines); f(*args); out = a.lines[n:]; del a.lines[n:]
    groups = [[]]
    for l in out:
        groups[-1].append(l)
        if l.startswith("buffer_load"): groups.append([])
    return ["\n".join(g) for g in groups if g]
def load_x(i):
    chunk_off(sA, i, 128)
    a(f"s_add_u32 m0, s{sLD}, {XS(i)}\ns_nop 0\nbuffer_load_dwordx4 v{vG0}, {srd(X)}, s{sA} offen lds")
    a(f"s_add_u32 m0, s{sLD}, {XS(i)+1024}\ns_mul_i32 s{sB}, s{sA}, 1536\nbuffer_load_dwordx4 v{vG1}, {srd(X)}, s{sA} offen lds")
    a(f"s_add_u32 m0, s{sD}, {WSL(i)}\ns_nop 0\nbuffer_load_dwordx4 v{vG2}, {srd(WQKV)}, s{sB} offen lds")
def load_wq(i):
    chunk_off(sA, i, 64*3072)
    a(f"s_add_u32 m0, s{sLD}, {WSL(i)+8192}\ns_nop 0\nbuffer_load_dwordx4 v{vG0}, {srd(WQKV)}, s{sA} offen lds")
def load_w1(c, vg):
    chunk_off(sA, c, 64*2752)
    a(f"s_add_u32 m0, s{sD}, {W1P[c//2][1]+12288*(c%2)}\ns_nop 0\nbuffer_load_dwordx4 v{vg}, {srd(W1)}, s{sA} offen lds")
def w1_loads(cs, vg=vG0): return sum((capture(load_w1, c, vg) for c in cs), [])
def step_loads(i, vm, ldf, nper, vg=vG0):
    out = []
    if i + NS - 1 < 8:
        out += capture(ldf, i + NS - 1); vm.add(('s', i + NS - 1), nper)
    if i == W1P[0][0] and vg == vG0: w1_addr(vG0)
    for d in range(4):
        if W1P[d][0] == i:
            out += w1_loads((2*d, 2*d+1), vg); vm.add(('w', d), 2)
    return out
def d_phase(d, vm, vg, kvrole, sigcode, pre=None):
    done = vm.done
    if OPT['sg0']:
        need = d not in done
        if need:
            last = 3 if (d == 2 and OPT['m23']) else d
            vm.wait(('w', last)); done.update(range(d, last+1))
        if pre: pre()
        stamp3(2+2*d)
        if need and not (d == 0 and not kvrole and OPT['qb']): a("s_barrier")
        if d == 0 and kvrole:
            vm.wait('kv'); sigcode()
        stamp3(3+2*d)
        out = []
        for e in range(4):
            if W1P[e][0] == 8 + d:
                out += w1_loads((2*e, 2*e+1), vg); vm.add(('w', e), 2)
        return out
    if d == OPT['sig'] and kvrole:
        vm.wait('kv'); sigcode()
    need = d not in done
    if need:
        ws = [d]
        if d == OPT['sig']: ws = [e for e in range(d, 4) if W1P[e][0] <= 7] or [d]
        if d > OPT['sig'] and d == 2 and W1P[3][0] <= W1P[2][0] and OPT['m23']: ws = [2, 3]
        last = max(ws + [d])
        if not (kvrole and d == OPT['sig'] and W1P[last][0] <= 7):
            if kvrole and d > OPT['sig'] and vm.cnt(('w', last)) == 0:
                L = a.newlabel("w")
                a(f"s_waitcnt vmcnt(1)\ns_cmp_eq_u32 s{sE}, 2\ns_cbranch_scc1 {L}\ns_waitcnt vmcnt(0)"); a.label(L)
            else: vm.wait(('w', last))
        done.update(range(d, last+1))
    if pre: pre()
    stamp3(2+2*d)
    if need and not (d == 0 and not kvrole and OPT['qb']): a("s_barrier")
    stamp3(3+2*d)
    out = []
    for e in range(4):
        if W1P[e][0] == 8 + d:
            out += w1_loads((2*e, 2*e+1), vg); vm.add(('w', e), 2)
    return out
class VM:
    def __init__(s): s.q = []; s.done = set()
    def cnt(s, tag): return len(s.q) - 1 - max(k for k, t in enumerate(s.q) if t == tag)
    def add(s, tag, n=1): s.q += [tag]*n
    def wait(s, tag):
        n = len(s.q) - 1 - max(k for k, t in enumerate(s.q) if t == tag)
        a(f"s_waitcnt vmcnt({n})")
class Base:
    def __init__(s, reg, adj=0): s.reg = reg; s.adj = adj
    def off(s, o, span):
        if o - s.adj < 0 or o - s.adj + span > 65535:
            a(f"v_add_u32 v{s.reg}, {(o - s.adj) & 0xffffffff}, v{s.reg}"); s.adj = o
        return o - s.adj
def w_addr():
    a(f"""v_lshrrev_b32 v{vT0}, 2, v{vL}
s_lshl_b32 s{sA}, s{sTT}, 4
v_add_u32 v{vT0}, s{sA}, v{vT0}
v_and_b32 v{vT1}, 3, v{vL}
s_lshl_b32 s{sA}, s{sHP}, 6
v_mul_u32_u24 v{vT0}, 3072, v{vT0}
v_lshl_add_u32 v{vT1}, v{vT1}, 4, s{sA}
v_add_u32 v{vG0}, v{vT0}, v{vT1}""")
def w1_addr(dst):
    a(f"""s_lshl_b32 s{sA}, s{sW}, 6
v_add_u32 v{vT0}, s{sA}, v{vL}
v_mul_u32_u24 v{vT1}, 43691, v{vT0}
s_mul_i32 s{sA}, s{sHP}, 192
v_lshrrev_b32 v{vT1}, 19, v{vT1}
s_movk_i32 s{sB}, 2752
v_mad_i32_i24 v{vT0}, v{vT1}, -12, v{vT0}
v_lshl_add_u32 v{vT0}, v{vT0}, 4, s{sA}
v_min_u32 v{vT0}, 2736, v{vT0}
v_mad_u32_u24 v{dst}, v{vT1}, s{sB}, v{vT0}""")

def w1_prefetch():
    st = 128 if OPT['pf'] == 1 else 64
    a(f"""s_lshr_b32 s{sA}, s2, 3
s_lshl_b32 s{sA}, s{sA}, 3
s_add_u32 s{sA}, s{sA}, s{sW}
s_mul_i32 s{sA}, s{sA}, 5504
s_lshr_b32 s{sB}, s{sHP}, 3
s_mul_i32 s{sB}, s{sB}, 1216
s_add_u32 s{sA}, s{sA}, s{sB}""")
    for r in range(2):
        offs = list(range(0, 1536, 64)) if st == 64 else ([0] + list(range(64, 1536, 128)) if r else list(range(0, 1536, 128)) + [1532])
        for o in offs:
            a(f"s_buffer_load_dword s{sCNT}, {srd(W1)}, s{sA} offset:{2752*r+o}")
def qkv_step(i, role, bx, bw, ld=()):
    ld = list(ld)
    if not OPT['late']:
        for g in ld: a(g)
        ld = []
    wo = bw.off(WSL(i), 8192); xo = bx.off(XS(i), 0)
    rb_ = 64 if role == 'Q' else 128
    def xr(s):
        a(f"ds_read_b128 {vr(16*i+4*s,4)}, v{vXA} offset:{xo}")
        a(f"v_xor_b32 v{vXA}, {32 if s%2==0 else 96}, v{vXA}")
    def wr(s):
        a(f"ds_read_b64_tr_b16 {vr(WF+4*s,2)}, v{vWA} offset:{wo+16*rb_*s}")
        a(f"ds_read_b64_tr_b16 {vr(WF+4*s+2,2)}, v{vWA} offset:{wo+16*rb_*s+4*rb_}")
    def mf(j, s):
        c = "0" if (j == 0 and s == 0) else vr(ACC,16)
        A, B = (vr(16*j+4*s,4), vr(WF+4*s,4)) if role == 'V' else (vr(WF+4*s,4), vr(16*j+4*s,4))
        a(f"v_mfma_f32_32x32x16_bf16 {vr(ACC,16)}, {A}, {B}, {c}")
    gd = role == 'Q' and OPT['gdot']
    def dots(j, s, g):
        for r in range(4): a(f"v_dot2c_f32_bf16 v{vT1 if r%2 else vG1}, v{16*j+4*s+r}, v{g+r}")
    def gr(j, s, g): a(f"ds_read_b128 {vr(g,4)}, v{vT0} offset:{128*j+32*s}")
    if OPT['pipe']:
        for s in range(4):
            if i > 0: mf(i-1, s)
            if gd and i > 0: dots(i-1, s, 16*i+4*s)
            wr(s); xr(s)
            if gd and i < 7: gr(i, s, 16*i+16+4*s)
            for _ in range((len(ld) + 3 - s)//(4 - s)): a(ld.pop(0))
        if i < 7: a("s_waitcnt lgkmcnt(0)")
        else:
            for s in range(4):
                a(f"s_waitcnt lgkmcnt({9-(2 if gd else 3)*s})")
                mf(7, s)
                if gd: gr(7, s, WF+4*s)
            if gd:
                for s in range(4):
                    a(f"s_waitcnt lgkmcnt({3-s})")
                    dots(7, s, WF+4*s)
        return
    for s in range(4):
        xr(s); wr(s)
    for s in range(4):
        a(f"s_waitcnt lgkmcnt({9-3*s})")
        mf(i, s)
        for _ in range((len(ld) + 3 - s)//(4 - s)): a(ld.pop(0))
def pack(dst, src, n):
    for j in range(n):
        a(f"v_cvt_pk_bf16_f32 v{dst+j}, v{src+2*j}, v{src+2*j+1}")
def b1_init(ct_s):
    a(f"""v_lshrrev_b32 v{vT0}, 5, v{vL}
v_lshlrev_b32 v{vT0}, 3, v{vT0}
s_lshl_b32 s{sA}, s{ct_s}, 6
s_add_u32 s{sA}, s{sA}, {B1L}
v_add_u32 v{vT0}, s{sA}, v{vT0}""")
    for q in range(4):
        a(f"ds_read_b64 {vr(WF+8+2*q,2)}, v{vT0} offset:{16*q}")
def b1_fin():
    a("s_waitcnt lgkmcnt(0)")
    for q in range(8):
        a(f"v_lshlrev_b32 v{ACC+2*q}, 16, v{WF+8+q}\nv_and_b32 v{ACC+2*q+1}, 0xffff0000, v{WF+8+q}")
def ffn1_pair(d, bw, ld=(), fill=None):
    ld = list(ld)
    if not OPT['late']:
        for g in ld: a(g)
        ld = []
    base = bw.off(W1P[d][1], 22400)
    def rd(k):
        c, s = k//4, k % 4
        o = base + 12288*c + 3072*s
        r = WF+4*(k % 4)
        a(f"ds_read_b64_tr_b16 {vr(r,2)}, v{vWA} offset:{o}\nds_read_b64_tr_b16 {vr(r+2,2)}, v{vWA} offset:{o+768}")
    for k in range(4): rd(k)
    for k in range(8):
        a(f"s_waitcnt lgkmcnt({6 if k<5 else 2*(7-k)})")
        a(f"v_mfma_f32_32x32x16_bf16 {vr(ACC,16)}, {vr(WF+4*(k%4),4)}, {vr(32*d+4*k,4)}, {vr(ACC,16)}")
        if k < 4: rd(k+4)
        for _ in range((len(ld) + 7 - k)//(8 - k)): a(ld.pop(0))
        if fill:
            for x in fill[k]: a(x)
def ffn1_epi(tmp):
    for j in range(16): a(f"v_max_f32 v{ACC+j}, 0, v{ACC+j}")
    for j in range(8): a(f"v_pk_mul_f32 {vr(ACC+2*j,2)}, {vr(ACC+2*j,2)}, {vr(ACC+2*j,2)}")
    pack(tmp, ACC, 8)
def h_store(tmp, ct_s, av):
    L = a.newlabel("hs")
    a(f"""s_mul_i32 s{sA}, s{sHP}, 3
s_add_u32 s{sA}, s{sA}, s{ct_s}
s_cmp_ge_u32 s{sA}, 43
s_cbranch_scc1 {L}
s_lshl_b32 s{sA}, s{sA}, 1
s_lshl_b32 s{sB}, s{sRB}, 2
s_add_u32 s{sB}, s{sB}, s{sTT}
s_mul_i32 s{sB}, s{sB}, 86
s_add_u32 s{sA}, s{sA}, s{sB}
s_lshl_b32 s{sA}, s{sA}, 10
s_add_u32 s{sA}, s{sA}, {HB}
v_lshlrev_b32 v{av}, 4, v{vL}
buffer_store_dwordx4 {vr(tmp,4)}, v{av}, {srd(WS)}, s{sA} offen sc1
buffer_store_dwordx4 {vr(tmp+4,4)}, v{av}, {srd(WS)}, s{sA} offen offset:1024 sc1""")
    a.label(L)
def poll(cnt_s, val_v, adr_v, target=16):
    L = a.newlabel("poll"); D = a.newlabel("polld")
    a(f"v_mov_b32 v{adr_v}, 0\ns_mov_b64 exec, 1")
    a.label(L)
    a(f"""buffer_load_dword v{val_v}, v{adr_v}, {srd(WS)}, s{cnt_s} offen sc1
s_waitcnt vmcnt(0)
v_cmp_eq_u32 vcc, {target}, v{val_v}
s_nop 0
s_cbranch_vccnz {D}""")
    spin(L, D, 1)
    a.label(D)
    a("s_mov_b64 exec, -1")
def signal(cnt_s, v0_, v1_):
    a(f"""v_mov_b32 v{v0_}, 0
v_mov_b32 v{v1_}, 1
s_mov_b64 exec, 1
buffer_atomic_add v{v1_}, v{v0_}, {srd(WS)}, s{cnt_s} offen sc1
s_mov_b64 exec, -1""")

def role_kv():
    a(f"""v_lshrrev_b32 v1, 3, v{vL}
s_lshl_b32 s{sA}, s{sRB}, 7
s_lshl_b32 s{sB}, s{sW}, 4
s_add_u32 s{sA}, s{sA}, s{sB}
v_add_u32 v4, s{sA}, v1
v_lshlrev_b32 v4, 10, v4
v_and_b32 v2, 7, v{vL}
v_lshrrev_b32 v3, 4, v{vL}
v_xor_b32 v5, v2, v3
v_lshl_add_u32 v{vG0}, v5, 4, v4
v_xor_b32 v{vG1}, 64, v{vG0}
v_add_u32 v{vG1}, 8192, v{vG1}
s_lshl_b32 s{sLD}, s{sW}, 11
s_lshl_b32 s{sD}, s{sW}, 10
s_lshl_b32 s{sA}, s{sW}, 3
v_add_u32 v1, s{sA}, v1
v_mul_u32_u24 v1, 3072, v1
v_and_b32 v3, 1, v3
v_lshlrev_b32 v3, 2, v3
v_xor_b32 v2, v2, v3
v_lshl_add_u32 v1, v2, 4, v1
s_and_b32 s{sE}, s{sHP}, 1
s_lshl_b32 s{sA}, s{sE}, 10
s_lshr_b32 s{sF}, s{sHP}, 1
s_lshl_b32 s{sB}, s{sF}, 7
s_add_u32 s{sA}, s{sA}, s{sB}
s_add_u32 s{sA}, s{sA}, 1024
v_add_u32 v{vG2}, s{sA}, v1
s_lshr_b32 s{sC}, s{sW}, 2
s_waitcnt lgkmcnt(0)""")
    stamp2(1)
    for i in range(NS-1):
        if i and OPT['ib'] >= i: a('s_barrier')
        load_x(i)
    stamp2(2)
    a(f"""v_lshrrev_b32 v1, 5, v{vL}
v_bfe_u32 v2, v{vL}, 2, 2
v_lshl_add_u32 v1, v1, 3, v2
v_lshlrev_b32 v1, 7, v1
v_bfe_u32 v2, v{vL}, 4, 1
v_lshl_add_u32 v1, v2, 5, v1
v_and_b32 v2, 3, v{vL}
v_lshl_add_u32 v1, v2, 3, v1
v_bfe_u32 v2, v{vL}, 3, 1
v_xor_b32 v2, s{sC}, v2
v_lshl_add_u32 v1, v2, 6, v1
v_add_u32 v{vWA}, 16384, v1""")
    if OPT['pf']: w1_prefetch()
    a(f"s_cmp_lg_u32 s{sE}, 0\ns_cbranch_scc1 L_roleV")
    for role in "KV":
        if role == 'V': a.label("L_roleV")
        vm = VM(); bx = Base(vXA); bw = Base(vWA, 16384)
        for i in range(NS-1): vm.add(('s', i), 3)
        for i in range(8):
            vm.wait(('s', i))
            if i == 0: stamp2(3)
            a("s_barrier")
            if i in (0,1,2,4,7): stamp2({0:4,1:6,2:7,4:8,7:9}[i])
            if i == 0: stamp(1)
            qkv_step(i, role, bx, bw, step_loads(i, vm, load_x, 3))
            if i in (0,7): stamp2(5 if i == 0 else 10)
        vm.add('kv', 3)
        stamp(2); stamp3(1)
        b1_init(sC)
        a(f"v_mov_b32 v{vG1}, 0\ns_mov_b64 exec, 1\nbuffer_load_dword v{vXA}, v{vG1}, {srd(DBG)}, 0 offen sc1\ns_mov_b64 exec, -1")
        a(f"""s_lshl_b32 s{sA}, s{sF}, 1
s_add_u32 s{sA}, s{sA}, s{sC}
s_lshl_b32 s{sA}, s{sA}, 18
s_lshl_b32 s{sB}, s{sRB}, 2
s_add_u32 s{sB}, s{sB}, s{sTT}
s_lshl_b32 s{sB}, s{sB}, 11
s_add_u32 s{sA}, s{sA}, s{sB}
s_add_u32 s{sA}, s{sA}, {KVB}""")
        if role == 'K':
            a(f"""v_and_b32 v{vG2}, 0x33, v{vL}
v_bfe_u32 v{vG1}, v{vL}, 2, 1
v_lshl_add_u32 v{vG2}, v{vG1}, 3, v{vG2}
v_bfe_u32 v{vG1}, v{vL}, 3, 1
v_lshl_add_u32 v{vG2}, v{vG1}, 2, v{vG2}
v_lshlrev_b32 v{vG2}, 4, v{vG2}
s_add_u32 s{sB}, s{sA}, 131072""")
            pack(WF, ACC, 8)
            a(f"buffer_store_dwordx4 {vr(WF,4)}, v{vG2}, {srd(WS)}, s{sA} offen sc1")
            a(f"buffer_store_dwordx4 {vr(WF+4,4)}, v{vG2}, {srd(WS)}, s{sB} offen sc1")
        else:
            a(f"""v_and_b32 v{vG2}, 15, v{vL}
v_lshlrev_b32 v{vG2}, 4, v{vG2}
v_lshrrev_b32 v{vG1}, 5, v{vL}
v_lshl_add_u32 v{vG2}, v{vG1}, 8, v{vG2}
v_bfe_u32 v{vG1}, v{vL}, 4, 1
v_lshl_add_u32 v{vG2}, v{vG1}, 17, v{vG2}
s_nop 0""")
            pack(WF, ACC, 8)
            a(f"buffer_store_dwordx4 {vr(WF,4)}, v{vG2}, {srd(WS)}, s{sA} offen offset:1024 sc1")
            a(f"buffer_store_dwordx4 {vr(WF+4,4)}, v{vG2}, {srd(WS)}, s{sA} offen offset:1536 sc1")
        if role == 'K': a("s_branch L_kvffn")
    a.label("L_kvffn")
    a(f"s_lshl_b32 s{sA}, s{sC}, 6")
    wa64(vT0, vT1, sA, 192)
    bw = Base(vWA)
    b1_fin()
    def sigcode():
        a(f"""v_mov_b32 v{vT0}, {FLG+64}
v_mov_b32 v{vT1}, 1
s_mov_b64 exec, 1
ds_add_rtn_u32 v{vT0}, v{vT0}, v{vT1}
s_waitcnt lgkmcnt(0)
v_cmp_eq_u32 vcc, 7, v{vT0}
s_nop 0
s_cbranch_vccz L_s1done""")
        a.label("L_boot")
        a(f"""v_cmp_eq_u32 vcc, 1, v{vXA}
s_nop 0
s_cbranch_vccnz L_bootok
v_mov_b32 v{vT0}, 0
buffer_load_dword v{vXA}, v{vT0}, {srd(DBG)}, 0 offen sc1
s_waitcnt vmcnt(0)""")
        spin("L_boot", "L_bootok", 1)
        a.label("L_bootok")
        a(f"s_lshl_b32 s{sA}, s{sF}, 8\nv_mov_b32 v{vT0}, 0\nbuffer_atomic_add v{vT1}, v{vT0}, {srd(WS)}, s{sA} offen sc1\ns_mov_b32 s{sE}, 2")
        a.label("L_s1done")
        a("s_mov_b64 exec, -1")
    for d in range(4):
        if OPT['fill']: ffn1_pair(d, bw, d_phase(d, vm, vG0, True, sigcode), att_fill(d))
        else: ffn1_pair(d, bw, d_phase(d, vm, vG0, True, sigcode, att_setup if d == 3 else None))
    attention()

KV = [0, 12, 24, 36]; QF = 48; OA = 64; SX, SY = 128, 144
vK, vV, vI = 160, 162, 163
def kv_load(b):
    a(f"""buffer_load_dwordx4 {vr(KV[b],4)}, v{vK}, {srd(WS)}, s{sD} offen sc1
s_mov_b64 exec, {sr(sVM,2)}
buffer_load_dwordx4 {vr(KV[b]+4,4)}, v{vV}, {srd(WS)}, s{sD} offen offset:1024 sc1
buffer_load_dwordx4 {vr(KV[b]+8,4)}, v{vV}, {srd(WS)}, s{sD} offen offset:1536 sc1
s_mov_b64 exec, -1
s_add_u32 s{sD}, s{sD}, 8192
s_and_b32 s{sD}, s{sD}, 0x1ffff""")
def qk(dst, kb, q, c="0"):
    a(f"v_mfma_f32_32x32x16_bf16 {vr(dst,16)}, {vr(KV[kb],4)}, {vr(QF+4*q,4)}, {c}")
def pv(q, kb, s, src):
    a(f"v_smfmac_f32_32x32x32_bf16 {vr(OA+16*q,16)}, {vr(KV[kb]+4+4*s,4)}, {vr(src+8*s,8)}, v{vI}")
def ex(r): a(f"v_exp_f32 v{r}, v{r}")
def q_frags():
    for j in range(4):
        a(f"""s_add_u32 s{sA}, s{sTT}, {j}
s_and_b32 s{sA}, s{sA}, 3
s_lshl_b32 s{sB}, s{sC}, 2
s_add_u32 s{sA}, s{sA}, s{sB}
s_lshl_b32 s{sA}, s{sA}, 10
s_add_u32 s{sA}, s{sA}, {QST}
v_lshl_add_u32 v{vT0}, v{vL}, 4, s{sA}
ds_read_b128 {vr(QF+4*j,4)}, v{vT0}""")
def kv_addr():
    a(f"""s_lshl_b32 s{sA}, s{sHP}, 1
s_add_u32 s{sA}, s{sA}, s{sC}
s_lshl_b32 s{sA}, s{sA}, 17
s_lshl_b32 s{sB}, s{sTT}, 11
s_add_u32 s{sA}, s{sA}, s{sB}
s_add_u32 s{sA}, s{sA}, {KVB}
v_lshl_add_u32 v{vK}, v{vL}, 4, s{sA}
v_and_b32 v{vV}, 15, v{vL}
v_lshl_add_u32 v{vV}, v{vV}, 4, s{sA}
v_lshrrev_b32 v{vT0}, 5, v{vL}
v_lshl_add_u32 v{vV}, v{vT0}, 8, v{vV}
v_mov_b32 v{vI}, 0xdddd
s_lshl_b32 s{sD}, s{sRB}, 13""")
def att_setup():
    q_frags(); kv_addr()
    for b in range(4):
        for j in range(8): a(f"v_mov_b32 v{KV[b]+4+j}, 0x3f803f80")
    for j in range(32): a(f"v_mov_b32 v{OA+j}, 0")
    a("s_waitcnt lgkmcnt(0)")
def att_fill(d):
    def spread(items, lo=0):
        out = [[] for _ in range(8)]; n = len(items)
        for j, x in enumerate(items): out[lo + j*(8-lo)//n].append(x)
        return out
    def mov2(r, val): return f"v_mov_b64 {vr(r,2)}, {val}" if val == 0 else f"v_mov_b32 v{r}, {val}\nv_mov_b32 v{r+1}, {val}"
    one = 0x3f803f80
    if d == 0: return None
    if d == 1: return spread([mov2(r, one) for r in (4,6,8,10,16,18,20,22,28,30)])
    if d == 2:
        it = [mov2(r, one) for r in (32,34,40,42,44,46)]
        n = len(a.lines); kv_addr(); ad = a.lines[n:]; del a.lines[n:]
        return spread(it + ad)
    out = spread([mov2(OA+2*j, 0) for j in range(16)])
    for k in range(1, 8): out[k] += [mov2(96+4*(k-1), 0), mov2(98+4*(k-1), 0)]
    n = len(a.lines); q_frags(); out[7] += a.lines[n:]; del a.lines[n:]
    return out
def attention():
    a(f"""s_lshl_b32 s{sA}, s{sW}, 2
s_add_u32 s{sA}, s{sA}, {FLG}
v_mov_b32 v{vG2}, s{sA}
v_mov_b32 v{vT1}, 1
s_mov_b32 s{sCNT}, 4""")
    a("s_nop 6")
    ffn1_epi(WF)
    if not OPT['hl']: h_store(WF, sC, vT0)
    a(f"""s_lshl_b32 s{sA}, s{sRB}, 2
s_add_u32 s{sA}, s{sA}, s{sTT}
s_lshl_b32 s{sA}, s{sA}, 5
s_lshl_b32 s{sB}, s{sHP}, 1
s_add_u32 s{sA}, s{sA}, s{sB}
s_add_u32 s{sA}, s{sA}, s{sC}
s_lshl_b32 s{sF}, s{sA}, 10
s_add_u32 s{sF}, s{sF}, {OB}""")
    for j in range(60 if OPT['fill'] else 32, 64, 2): a(f"v_mov_b64 {vr(OA+j,2)}, 0")
    for j in range(0, 8, 2): a(f"v_mov_b64 {vr(SY+8+j,2)}, 0")
    a("s_waitcnt lgkmcnt(0)")
    stamp(3)
    a("s_barrier")
    if OPT['aprio']: a("s_setprio 2")
    for b in range(OPT['kvi']): kv_load(b)
    stamp(4)
    a(f"s_waitcnt vmcnt({3*OPT['kvi']-3})")
    if not OPT['hl']: a(f"ds_write_b32 v{vG2}, v{vT1}")
    stamp(5); stamp3(10)
    qk(SX, 0, 0)
    for b in range(OPT['kvi'], 3): kv_load(b)
    if OPT['hl']: h_store(WF, sC, vT0)
    a("s_nop 7\ns_nop 3" if OPT['kvi'] == 3 else "s_nop 4" if OPT['kvi'] == 2 else "")
    a(".p2align 3")
    a.label("L_att")
    for kt in range(4):
        for q in range(4):
            Xr, Yr = (SX, SY) if q % 2 == 0 else (SY, SX)
            ex(Xr); ex(Xr+1)
            pv((q+3) % 4, kt if q else (kt+3) % 4, 1, Yr)
            if q == 0: kv_load((kt+3) % 4)
            for j in range(2, 5): ex(Xr+j)
            if q == 3:
                a("s_waitcnt vmcnt(6)")
                qk(Yr, (kt+1) % 4, 0)
                if kt == 1:
                    a(f"s_cmp_lg_u32 s{sCNT}, 4\ns_cbranch_scc1 L_ap1")
                    if OPT['hl']: a(f"ds_write_b32 v{vG2}, v{vT1}")
                    if OPT['aprio']: a("s_setprio 1")
                    a.label("L_ap1")
            else: qk(Yr, kt, q+1)
            for j in range(5, 10): ex(Xr+j)
            pv(q, kt, 0, Xr)
            if OPT['aprio'] and 4*kt+q == OPT['aprio']:
                a(f"s_cmp_lg_u32 s{sCNT}, 1\ns_cbranch_scc1 L_ap2\ns_setprio 0")
                a.label("L_ap2")
            if q == 3 and kt == 3: a(f"s_sub_u32 s{sCNT}, s{sCNT}, 1\ns_cmp_lg_u32 s{sCNT}, 0")
            for j in range(10, 16): ex(Xr+j)
    a("s_cbranch_scc1 L_att")
    a("s_nop 1")
    pv(3, 3, 1, SY)
    stamp(6)
    for j in range(1, 4):
        a(f"""s_add_u32 s{sA}, s{sTT}, {j}
s_and_b32 s{sA}, s{sA}, 3
s_lshl_b32 s{sB}, s{sC}, 2
s_add_u32 s{sA}, s{sA}, s{sB}
s_mul_i32 s{sA}, s{sA}, 6912
s_add_u32 s{sA}, s{sA}, {2304*(j-1)}
v_lshl_add_u32 v{SX+j}, v{vL}, 4, s{sA}
v_lshl_add_u32 v{SX+4+j}, v{vL}, 2, s{sA}""")
        if j == 3: a("s_nop 3")
    for j in range(1, 4):
        a(f"""ds_write_b128 v{SX+j}, {vr(OA+16*j,4)}
ds_write_b128 v{SX+j}, {vr(OA+16*j+4,4)} offset:1024
ds_write_b32 v{SX+4+j}, v{OA+16*j+8} offset:2048""")
    a(f"""s_mul_i32 s{sA}, s{sW}, 6912
v_lshl_add_u32 v{SX}, v{vL}, 4, s{sA}
v_lshl_add_u32 v{SX+4}, v{vL}, 2, s{sA}
v_and_b32 v{SX+8}, 31, v{vL}
s_lshl_b32 s{sA}, s{sTT}, 7
s_add_u32 s{sA}, s{sA}, {GL}
v_lshl_add_u32 v{SX+8}, v{SX+8}, 2, s{sA}
s_waitcnt lgkmcnt(0)
s_barrier""")
    stamp(7)
    P = OA+16
    for j in range(3):
        a(f"""ds_read_b128 {vr(P+16*j,4)}, v{SX} offset:{2304*j}
ds_read_b128 {vr(P+16*j+4,4)}, v{SX} offset:{2304*j+1024}
ds_read_b32 v{P+16*j+8}, v{SX+4} offset:{2304*j+2048}""")
    vg = SX+9
    a(f"ds_read_b32 v{vg}, v{SX+8}")
    a(f"v_lshlrev_b32 v{SX+10}, 4, v{vL}")
    for j in range(3):
        a(f"s_waitcnt lgkmcnt({7-3*j})")
        for r in range(9): a(f"v_add_f32 v{OA+r}, v{OA+r}, v{P+16*j+r}")
    t = SX+11
    a(f"v_mul_f32 v{t}, 0, v{OA}")
    for r in range(1, 8): a(f"v_fmac_f32 v{t}, 0, v{OA+r}")
    a(f"""v_add_f32 v{t}, v{t}, v{OA+8}
v_cmp_nle_f32 vcc, 0x2b800000, v{t}
v_cmp_nge_f32 s[{sA+1}:{sA+2}], v{t+1}, v{t}""".replace(f"v_cmp_nle", f"v_mov_b32 v{t+1}, 0x53800000\nv_cmp_nle"))
    a(f"s_nop 0\ns_or_b64 vcc, vcc, s[{sA+1}:{sA+2}]")
    a("s_cbranch_vccnz L_fb" if not OPT['forcefb'] else "s_branch L_fb")
    a.label("L_fbdone")
    a(f"v_rcp_f32 v{t}, v{OA+8}\ns_waitcnt lgkmcnt(0)\nv_mul_f32 v{t}, v{t}, v{vg}")
    for r in range(8): a(f"v_mul_f32 v{OA+r}, v{OA+r}, v{t}")
    pack(OA, OA, 4)
    for r in range(4): a(f"v_min_u32 v{OA+r}, -2, v{OA+r}")
    a(f"buffer_store_dwordx4 {vr(OA,4)}, v{SX+10}, {srd(WS)}, s{sF} offen sc1")
    R, Cc, A0, A1, A2, A3, OADR, BV, T = 16, 17, 18, 19, 20, 21, 22, 24, 32
    stamp(8)
    a(f"""v_lshrrev_b32 v{R}, 3, v{vL}
s_lshl_b32 s{sA}, s{sW}, 3
v_add_u32 v{R}, s{sA}, v{R}
v_and_b32 v{Cc}, 7, v{vL}
s_lshr_b32 s{sA}, s{sHP}, 1
s_lshl_b32 s{sA}, s{sA}, 7
v_lshl_add_u32 v{A0}, v{Cc}, 4, s{sA}
buffer_load_dwordx4 {vr(BV,4)}, v{A0}, {srd(B2)}, 0 offen
s_and_b32 s{sB}, s{sHP}, 1
s_lshl_b32 s{sB}, s{sB}, 6
v_add_u32 v{A1}, s{sB}, v{R}
v_lshlrev_b32 v{A2}, 2, v{A1}
v_add_u32 v{A2}, {GL}, v{A2}
ds_read_b32 v{vg}, v{A2}
s_lshl_b32 s{sB}, s{sRB}, 7
v_add_u32 v{A1}, s{sB}, v{A1}
v_lshl_add_u32 v{OADR}, v{A1}, 10, v{A0}
v_lshlrev_b32 v{A0}, 1, v{Cc}
v_and_b32 v{A1}, 15, v{R}
v_xor_b32 v{A0}, v{A0}, v{A1}
v_lshlrev_b32 v{A0}, 4, v{A0}
v_lshl_add_u32 v{A0}, v{R}, 8, v{A0}
v_add_u32 v{A0}, {FP[0]}, v{A0}
v_xor_b32 v{A1}, 16, v{A0}
s_waitcnt vmcnt(0) lgkmcnt(0)
v_sub_f32 v{vg}, 1.0, v{vg}""")
    for q in range(4):
        a(f"v_lshlrev_b32 v{T+2*q}, 16, v{BV+q}\nv_and_b32 v{T+2*q+1}, 0xffff0000, v{BV+q}")
    for r in range(8): a(f"v_mul_f32 v{T+r}, v{T+r}, v{vg}")
    a("s_barrier")
    stamp(9)
    for p in range(4):
        x0, x1, o = A0, A1, 16384*p
        a(f"ds_read_b128 {vr(64+8*p,4)}, v{x0} offset:{o}\nds_read_b128 {vr(68+8*p,4)}, v{x1} offset:{o}")
    for p in range(4):
        a(f"s_waitcnt lgkmcnt({6-2*p})")
        for r in range(8): a(f"v_add_f32 v{T+r}, v{T+r}, v{64+8*p+r}")
    pack(T, T, 4)
    a(f"buffer_store_dwordx4 {vr(T,4)}, v{OADR}, {srd(OUT)}, 0 offen")
    stamp(10)
    a("s_branch L_end")
    fallback()

def fallback():
    M, NC = SY, 96
    a.label("L_fb")
    a(f"""s_waitcnt vmcnt(0) lgkmcnt(0)
s_lshl_b32 s{sA}, s{sTT}, 11
v_subrev_u32 v{vK}, s{sA}, v{vK}
v_subrev_u32 v{vV}, s{sA}, v{vV}
v_mov_b32 v{M}, 0xff800000
s_mov_b32 s{sD}, 0""")
    a.label("L_fb1")
    a(f"buffer_load_dwordx4 {vr(KV[0],4)}, v{vK}, {srd(WS)}, s{sD} offen sc1\ns_waitcnt vmcnt(0)")
    qk(NC, 0, 0)
    a("s_nop 7\ns_nop 3")
    for j in range(8): a(f"v_max3_f32 v{M}, v{NC+2*j}, v{NC+2*j+1}, v{M}")
    a(f"s_add_u32 s{sD}, s{sD}, 2048\ns_cmp_lg_u32 s{sD}, 131072\ns_cbranch_scc1 L_fb1")
    a(f"""v_mov_b32 v{M+1}, v{M}
s_nop 1
v_permlane32_swap_b32 v{M}, v{M+1}
s_nop 1
v_max_f32 v{M}, v{M}, v{M+1}""")
    for j in range(16): a(f"v_sub_f32 v{112+j}, 0, v{M}\nv_mov_b32 v{OA+j}, 0")
    a(f"s_mov_b32 s{sD}, 0")
    a.label("L_fb2")
    a(f"""buffer_load_dwordx4 {vr(KV[0],4)}, v{vK}, {srd(WS)}, s{sD} offen sc1
s_mov_b64 exec, {sr(sVM,2)}
buffer_load_dwordx4 {vr(KV[0]+4,4)}, v{vV}, {srd(WS)}, s{sD} offen offset:1024 sc1
buffer_load_dwordx4 {vr(KV[0]+8,4)}, v{vV}, {srd(WS)}, s{sD} offen offset:1536 sc1
s_mov_b64 exec, -1
s_waitcnt vmcnt(0)""")
    qk(NC, 0, 0, vr(112,16))
    a("s_nop 7\ns_nop 3")
    for j in range(16): ex(NC+j)
    a("s_nop 1")
    pv(0, 0, 0, NC); pv(0, 0, 1, NC)
    a(f"s_add_u32 s{sD}, s{sD}, 2048\ns_cmp_lg_u32 s{sD}, 131072\ns_cbranch_scc1 L_fb2")
    a("s_nop 7\ns_nop 3\ns_branch L_fbdone")

def role_q_head():
    w_addr()
    a(f"""s_lshl_b32 s{sLD}, s{sTT}, 10
s_lshl_b32 s{sD}, s{sW}, 10
s_mov_b32 s{sC}, 2""")
    a(f"""v_lshlrev_b32 v1, 2, v{vL}
v_add_u32 v2, {FLG}, v1
v_mov_b32 v3, 0
s_lshl_b32 s{sA}, s{sST}, 7
v_lshl_add_u32 v4, v{vL}, 4, s{sA}
v_and_b32 v4, 1023, v4
s_mul_i32 s{sA}, s{sHP}, 192
v_add_u32 v5, s{sA}, v1
v_lshlrev_b32 v6, 8, v{vL}
s_waitcnt lgkmcnt(0)""")
    stamp2(1)
    a(f"""s_cmp_lg_u32 s{sW}, 11
s_cbranch_scc1 L_q1
s_cmp_lg_u32 s2, 0
s_cbranch_scc1 L_q0
s_mov_b64 exec, 0xffffffffffff
buffer_store_dword v3, v6, {srd(WS)}, 0 offen sc1
s_mov_b64 exec, -1""".replace("s_mov_b64 exec, 0xffffffffffff", "s_mov_b32 exec_hi, 0"))
    a.label("L_q0")
    a(f"""ds_write_b32 v2, v3
s_mov_b32 m0, {GWL}
s_nop 0
buffer_load_dwordx4 v4, {srd(GW)}, 0 offen lds
s_mov_b32 m0, {B1L}
s_nop 0
buffer_load_dword v5, {srd(B1)}, 0 offen lds""")
    a.label("L_q1")
    for i in range(NS-1):
        if i and OPT['ib'] >= i: a('s_barrier')
        load_wq(i)
    if OPT['qp']: a('s_branch L_roleQ')
def role_q():
    a.label("L_roleQ")
    if not OPT['qp']: role_q_head()
    w1_addr(vG2)
    stamp2(2)
    a(f"s_mov_b32 s{sA}, {16384+8192}")
    wa64(1, 2, sA)
    if OPT['gdot']:
        a(f"v_lshrrev_b32 v{vT0}, 5, v{vL}\nv_lshlrev_b32 v{vT0}, 4, v{vT0}\nv_add_u32 v{vT0}, {GWL}, v{vT0}\nv_mov_b32 v{vT1}, 0\nv_mov_b32 v{vG1}, 0")
    vm = VM(); bx = Base(vXA); bw = Base(vWA, 16384)
    for i in range(NS-1): vm.add(('s', i))
    for i in range(8):
        vm.wait(('s', i))
        if i == 0:
            a(f"""s_cmp_lg_u32 s{sW}, 11
s_cbranch_scc1 L_q2
s_cmp_lg_u32 s2, 0
s_cbranch_scc1 L_q2
v_mov_b32 v4, 1
s_mov_b64 exec, 1
buffer_store_dword v4, v3, {srd(DBG)}, 0 offen sc1
s_mov_b64 exec, -1""")
            a.label("L_q2")
        if i == 0: stamp2(3)
        a("s_barrier")
        if i in (0,1,2,4,7): stamp2({0:4,1:6,2:7,4:8,7:9}[i])
        if i == 0: stamp(1)
        ld = step_loads(i, vm, load_wq, 1, vG2)
        if i == OPT['clr']:
            assert not OPT['gdot'] and i < 6
            ld.append(f"""s_lshl_b32 s{sA}, s{sRB}, 2
s_add_u32 s{sA}, s{sA}, s{sTT}
s_lshl_b32 s{sA}, s{sA}, 4
s_add_u32 s{sA}, s{sA}, s{sHP}
s_lshl_b32 s{sA}, s{sA}, 11
s_add_u32 s{sA}, s{sA}, {OB}
v_lshlrev_b32 v116, 4, v{vL}
v_mov_b64 v[112:113], -1
v_mov_b64 v[114:115], -1
buffer_store_dwordx4 v[112:115], v116, {srd(WS)}, s{sA} offen sc1
buffer_store_dwordx4 v[112:115], v116, {srd(WS)}, s{sA} offen offset:1024 sc1""")
            vm.add('clr', 2)
        qkv_step(i, 'Q', bx, bw, ld)
        if i in (0,7): stamp2(5 if i == 0 else 10)
    stamp(2); stamp3(1)
    if OPT['qb']:
        assert OPT['sg0'] or OPT['sig'] > 0
        vm.wait(('w', 0)); a("s_barrier")
    if OPT['gdot']: a(f"s_nop 2\nv_add_f32 v{vG1}, v{vG1}, v{vT1}")
    b1_init(sC)
    if OPT['gdot']:
        a(f"v_mov_b32 v{vG0}, v{vG1}\ns_nop 1\nv_permlane32_swap_b32 v{vG0}, v{vG1}\ns_nop 1\nv_add_f32 v{vG1}, v{vG0}, v{vG1}")
        sigmoid(vG1)
    a(f"""s_lshl_b32 s{sA}, s{sTT}, 10
s_add_u32 s{sA}, s{sA}, {QST}
v_lshl_add_u32 v{vXA}, v{vL}, 4, s{sA}
s_mov_b32 s{sA}, {QSC}
s_nop 1""")
    for j in range(16): a(f"v_mul_f32 v{ACC+j}, s{sA}, v{ACC+j}")
    pack(WF, ACC, 8)
    a(f"ds_write_b128 v{vXA}, {vr(WF,4)}\nds_write_b128 v{vXA}, {vr(WF+4,4)} offset:4096")
    a(f"s_movk_i32 s{sA}, 128")
    wa64(vT0, vT1, sA, 192)
    bw = Base(vWA)
    b1_fin()
    for d in range(4):
        ffn1_pair(d, bw, d_phase(d, vm, vG2, False, None))
    gemm()

GA = 0
HF = [64, 72, 80, 88]
WR = 96
vH, vWa, vWb, vR0, vR1 = 160, 161, 162, 163, 164
def sigmoid(r):
    a(f"""v_mul_f32 v{r}, 0xbfb8aa3b, v{r}
v_exp_f32 v{r}, v{r}
v_and_b32 v{vT0}, 31, v{vL}
v_add_f32 v{r}, 1.0, v{r}
v_rcp_f32 v{r}, v{r}
s_lshl_b32 s{sA}, s{sTT}, 7
s_add_u32 s{sA}, s{sA}, {GL}
v_lshl_add_u32 v{vT0}, v{vT0}, 2, s{sA}
ds_write_b32 v{vT0}, v{r}""")
def gate():
    a(f"v_lshrrev_b32 v{vT0}, 5, v{vL}\nv_lshlrev_b32 v{vT0}, 4, v{vT0}\nv_add_u32 v{vT0}, {GWL}, v{vT0}")
    G4 = [152, 156, 144, 148]
    for k in range(4): a(f"ds_read_b128 {vr(G4[k],4)}, v{vT0} offset:{32*k}")
    for k in range(32):
        a(f"s_waitcnt lgkmcnt({min(3,31-k)})")
        a(f"v_mfma_f32_32x32x16_bf16 {vr(ACC,16)}, {vr(G4[k%4],4)}, {vr(4*k,4)}, {'0' if k==0 else vr(ACC,16)}")
        if k < 28: a(f"ds_read_b128 {vr(G4[k%4],4)}, v{vT0} offset:{32*(k+4)}")
def s1_pre():
    a(f"""s_cmp_lg_u32 s{sW}, 8
s_cbranch_scc1 L_e0
s_lshr_b32 s{sD}, s{sHP}, 1
s_lshl_b32 s{sD}, s{sD}, 8
v_mov_b32 v{vR1}, 0
s_mov_b64 exec, 1
buffer_load_dword v{vR0}, v{vR1}, {srd(WS)}, s{sD} offen sc1
s_mov_b64 exec, -1""")
    a.label("L_e0")
def s1_wait():
    a(f"s_cmp_lg_u32 s{sW}, 8\ns_cbranch_scc1 L_e")
    stamp3(10)
    a(f"s_mov_b64 exec, 1\ns_waitcnt vmcnt(0)\nv_cmp_eq_u32 vcc, 32, v{vR0}\ns_mov_b64 exec, -1\ns_cbranch_vccnz L_e")
    poll(sD, vT0, vT1, 32)
    a.label("L_e")
    stamp(3)
    a("s_barrier")
    a(f"s_setprio {OPT['prio']}")
def gemm():
    s1_pre()
    a(f"""v_lshrrev_b32 v{vT0}, 3, v{vL}
v_lshlrev_b32 v{vT0}, 10, v{vT0}
v_bfe_u32 v{vT1}, v{vL}, 4, 1
v_lshlrev_b32 v{vT1}, 2, v{vT1}
v_and_b32 v{vWa}, 7, v{vL}
v_xor_b32 v{vWa}, v{vWa}, v{vT1}
v_lshl_add_u32 v{vWa}, v{vWa}, 4, v{vT0}
s_lshr_b32 s{sA}, s{sHP}, 1
s_lshl_b32 s{sA}, s{sA}, 7
v_add_u32 v{vWa}, s{sA}, v{vWa}
v_add_u32 v{vWb}, 8192, v{vWa}
s_nop 0""")
    ffn1_epi(WF)
    s1_wait()
    h_store(WF, sC, vT0)
    if not OPT['gdot'] and OPT['gpre'] != 2: gate()
    if not OPT['gdot'] and OPT['gpre'] != 2:
        a("s_nop 7\ns_nop 3"); sigmoid(ACC)
    a(f"""s_lshl_b32 s{sA}, s{sW}, 2
s_add_u32 s{sA}, s{sA}, {FLG}
v_mov_b32 v{vT0}, s{sA}
v_mov_b32 v{vT1}, 1
s_waitcnt vmcnt(0)
ds_write_b32 v{vT0}, v{vT1}""")
    a(f"""v_lshrrev_b32 v{vT0}, 5, v{vL}
v_bfe_u32 v{vT1}, v{vL}, 2, 2
v_lshl_add_u32 v{vT0}, v{vT0}, 2, v{vT1}
v_lshlrev_b32 v{vT0}, 7, v{vT0}
v_bfe_u32 v{vT1}, v{vL}, 4, 1
v_lshl_add_u32 v{vT0}, v{vT1}, 5, v{vT0}
v_and_b32 v{vT1}, 3, v{vL}
v_lshl_add_u32 v{vT0}, v{vT1}, 3, v{vT0}
v_bfe_u32 v{vT1}, v{vL}, 3, 1
v_lshl_add_u32 v{vT0}, v{vT1}, 6, v{vT0}
s_lshl_b32 s{sLD}, s{sTT}, 13
s_add_u32 s{sLD}, s{sLD}, {RING}
v_add_u32 v{vR0}, s{sLD}, v{vT0}
v_xor_b32 v{vR1}, 64, v{vR0}""")
    if OPT['gdot'] or OPT['gpre'] != 2:
        for j in range(0, 64, 2): a(f"v_mov_b64 {vr(GA+j,2)}, 0")
    a(f"""s_mul_i32 s{sD}, s{sTT}, 22
s_cmp_eq_u32 s{sTT}, 3
s_subb_u32 s{sD}, s{sD}, 0
s_lshr_b32 s{sA}, s{sTT}, 1
s_sub_u32 s{sCNT}, 22, s{sA}
s_add_u32 s{sE}, s{sD}, s{sCNT}
s_sub_u32 s{sE}, s{sE}, 1
s_lshl_b32 s{sA}, s{sRB}, 2
s_and_b32 s{sB}, s{sHP}, 1
s_lshl_b32 s{sB}, s{sB}, 1
s_add_u32 s{sF}, s{sA}, s{sB}
s_mul_i32 s{sA}, s{sF}, {86*1024}
s_add_u32 s{sA}, s{sA}, {HB}
v_lshl_add_u32 v{vH}, v{vL}, 4, s{sA}""")
    a(f"s_lshl_b32 s{sC}, s{sRB}, 8\ns_add_u32 s{sC}, s{sC}, 4096")
    a(f"s_cmp_lg_u32 s{sW}, 8\ns_cbranch_scc1 L_s2done")
    a(f"v_lshlrev_b32 v{vT0}, 2, v{vL}\nv_add_u32 v{vT0}, {FLG}, v{vT0}\ns_mov_b64 exec, 0xfff")
    a.label("L_flg")
    a(f"""ds_read_b32 v{vT1}, v{vT0}
s_waitcnt lgkmcnt(0)
v_cmp_ne_u32 vcc, 1, v{vT1}
s_nop 0
s_cbranch_vccz L_flgok""")
    spin("L_flg", "L_flgok", 4)
    a.label("L_flgok")
    a("s_mov_b64 exec, -1")
    signal(sC, vT0, vT1)
    a.label("L_s2done")
    a(f"s_setprio {OPT['prio2']}")
    a(f"s_lshl_b32 s{sA}, s{sTT}, 17\ns_lshl_b32 s{sB}, s{sTT}, 14\ns_add_u32 s{sB}, s{sB}, {WOL}")
    for n in range(8):
        a(f"""s_add_u32 m0, s{sB}, {2048*n}
s_nop 0
buffer_load_dwordx4 v{vWa}, {srd(WO)}, s{sA} offen lds
s_add_u32 m0, s{sB}, {2048*n+1024}
s_nop 0
buffer_load_dwordx4 v{vWb}, {srd(WO)}, s{sA} offen lds
s_add_u32 s{sA}, s{sA}, 16384""")
    if not OPT['gdot'] and OPT['gpre'] == 2:
        gate()
        for j in range(64): a(f"v_mov_b32 v{GA+j}, 0")
        sigmoid(ACC)
    stamp(4)
    poll(sC, vT0, vT1)
    stamp(5)
    def issue(st):
        a(f"""s_lshl_b32 s{sA}, s{sD}, 14
s_add_u32 m0, s{sLD}, {2048*st}
s_lshl_b32 s{sB}, s{sD}, 10
buffer_load_dwordx4 v{vWa}, {srd(W2)}, s{sA} offen lds
s_add_u32 m0, s{sLD}, {2048*st+1024}
buffer_load_dwordx4 {vr(HF[st],4)}, v{vH}, {srd(WS)}, s{sB} offen sc1
buffer_load_dwordx4 v{vWb}, {srd(W2)}, s{sA} offen lds
s_add_u32 s{sB}, s{sB}, {86*1024}
s_add_u32 s{sD}, s{sD}, 1
buffer_load_dwordx4 {vr(HF[st]+4,4)}, v{vH}, {srd(WS)}, s{sB} offen sc1
s_min_u32 s{sD}, s{sD}, s{sE}""")
    def wread(r, o):
        a(f"""ds_read_b64_tr_b16 {vr(r,2)}, v{vR0} offset:{o}
ds_read_b64_tr_b16 {vr(r+2,2)}, v{vR0} offset:{o+1024}
ds_read_b64_tr_b16 {vr(r+4,2)}, v{vR1} offset:{o}
ds_read_b64_tr_b16 {vr(r+6,2)}, v{vR1} offset:{o+1024}""")
    def mm(tt, ct, w, h):
        g = vr(GA+32*tt+16*ct, 16)
        a(f"v_mfma_f32_32x32x16_bf16 {g}, {vr(w+4*ct,4)}, {vr(h+4*tt,4)}, {g}")
    if OPT['nof2']: a("s_branch L_f2done")
    for st in range(4): issue(st)
    a.label("L_f2")
    for st in range(4):
        a("s_waitcnt vmcnt(12)")
        if OPT['f2s']:
            o = 2048*st
            a(f"ds_read_b64_tr_b16 {vr(WR,2)}, v{vR0} offset:{o}\nds_read_b64_tr_b16 {vr(WR+2,2)}, v{vR0} offset:{o+1024}\ns_waitcnt lgkmcnt(0)")
            mm(0, 0, WR, HF[st])
            a(f"ds_read_b64_tr_b16 {vr(WR+4,2)}, v{vR1} offset:{o}\ns_waitcnt lgkmcnt(0)")
            mm(1, 0, WR, HF[st])
            a(f"ds_read_b64_tr_b16 {vr(WR+6,2)}, v{vR1} offset:{o+1024}\ns_waitcnt lgkmcnt(0)")
            mm(0, 1, WR, HF[st])
            a(f"s_sub_u32 s{sCNT}, s{sCNT}, 1\ns_cmp_eq_u32 s{sCNT}, 0\ns_cbranch_scc1 L_f2x{st}")
            g = capture(issue, st)
            a(g[0]); a(g[1]); a(g[2])
            mm(1, 1, WR, HF[st])
            for x in g[3:]: a(x)
            continue
        wread(WR, 2048*st)
        a("s_waitcnt lgkmcnt(2)")
        mm(0, 0, WR, HF[st]); mm(1, 0, WR, HF[st])
        a("s_waitcnt lgkmcnt(0)")
        mm(0, 1, WR, HF[st]); mm(1, 1, WR, HF[st])
        a(f"s_sub_u32 s{sCNT}, s{sCNT}, 1\ns_cmp_eq_u32 s{sCNT}, 0\ns_cbranch_scc1 L_f2done")
        issue(st)
    a("s_branch L_f2")
    if OPT['f2s']:
        for st in range(4):
            a.label(f"L_f2x{st}")
            mm(1, 1, WR, HF[st])
            if st < 3: a("s_branch L_f2done")
    a.label("L_f2done")
    stamp(6)
    a(f"""s_lshl_b32 s{sA}, s{sTT}, 14
s_add_u32 s{sA}, s{sA}, {WOL}
s_sub_u32 s{sA}, s{sA}, s{sLD}
v_add_u32 v{vR0}, s{sA}, v{vR0}
v_add_u32 v{vR1}, s{sA}, v{vR1}
s_lshl_b32 s{sA}, s{sF}, 15
s_lshl_b32 s{sB}, s{sTT}, 13
s_add_u32 s{sA}, s{sA}, s{sB}
s_add_u32 s{sA}, s{sA}, {OB}
s_waitcnt vmcnt(0)
v_lshl_add_u32 v{vH}, v{vL}, 4, s{sA}
v_and_b32 v65, 7, v{vL}
v_lshl_add_u32 v65, v65, 10, s{sA}
v_bfe_u32 v{vT0}, v{vL}, 3, 1
v_lshl_add_u32 v65, v{vT0}, 15, v65
v_and_b32 v{vT0}, 31, v{vL}
s_and_b32 s{sB}, s{sHP}, 1
s_lshl_b32 s{sB}, s{sB}, 8
s_add_u32 s{sB}, s{sB}, {GL}
v_lshl_add_u32 v{vWb}, v{vT0}, 2, s{sB}
v_lshrrev_b32 v{vT1}, 5, v{vL}
v_and_b32 v{vWa}, 15, v{vL}
v_xor_b32 v{vWa}, v{vWa}, v{vT1}
v_lshlrev_b32 v{vWa}, 4, v{vWa}
v_lshl_add_u32 v{vWa}, v{vT0}, 8, v{vWa}
s_lshl_b32 s{sA}, s{sTT}, 14
s_add_u32 s{sA}, s{sA}, {FP[0]}
v_add_u32 v{vWa}, s{sA}, v{vWa}
s_waitcnt vmcnt(0)""")
    W8 = 128
    for k in range(4): wread(W8+8*k, 2048*k)
    a(f"""s_mov_b32 s{sB}, 4096
s_mov_b32 s{sC}, 32768
s_mov_b32 s{sD}, {32768+4096}
s_mov_b32 s{sE}, 0
s_barrier""")
    stamp(7)
    OF = 64
    def oload(k):
        a(f"buffer_load_dwordx4 {vr(OF+8*k,4)}, v{vH}, {srd(WS)}, {'0' if k < 4 else 's%d'%sB} offen offset:{1024*(k%4)} sc1")
        a(f"buffer_load_dwordx4 {vr(OF+8*k+4,4)}, v{vH}, {srd(WS)}, s{sC if k < 4 else sD} offen offset:{1024*(k%4)} sc1")
    def ocheck(k):
        r = OF+8*k
        a(f"""v_max3_u32 v{vT0}, v{r}, v{r+1}, v{r+2}
v_max3_u32 v{vT1}, v{r+3}, v{r+4}, v{r+5}
v_max3_u32 v{vT0}, v{r+6}, v{r+7}, v{vT0}
v_max_u32 v{vT0}, v{vT0}, v{vT1}
v_cmp_eq_u32 vcc, -1, v{vT0}""")
    def omm(k):
        w = W8+8*(k % 4)
        mm(0, 0, w, OF+8*k); mm(1, 0, w, OF+8*k); mm(0, 1, w, OF+8*k); mm(1, 1, w, OF+8*k)
    if OPT['prio3'] >= 0: a(f"s_setprio {OPT['prio3']}")
    a(f"""s_mov_b64 exec, 0xffff
buffer_load_dword v{OF}, v{OF+1}, {srd(WS)}, 0 offen sc1
s_mov_b64 exec, -1
ds_read_b32 v{vT0}, v{vWb}
ds_read_b32 v{vWb}, v{vWb} offset:128
s_waitcnt lgkmcnt(0)
v_sub_f32 v{vT0}, 1.0, v{vT0}
v_sub_f32 v{vWb}, 1.0, v{vWb}""")
    for j in range(0, 64, 2):
        g = vT0 if j < 32 else vWb
        a(f"v_pk_mul_f32 {vr(GA+j,2)}, {vr(GA+j,2)}, {vr(g,2)} op_sel_hi:[1,0]")
    a("s_mov_b64 exec, 0xffff")
    a.label("L_opoll")
    a(f"s_waitcnt vmcnt(0)\nv_cmp_eq_u32 vcc, -1, v{OF}\ns_nop 0\ns_cbranch_vccz L_ordy")
    if OPT['bound']: a("s_add_u32 s63, s63, 1\ns_cmp_gt_u32 s63, 100000\ns_cbranch_scc1 L_ordy")
    if OPT['slp']: a(f"s_sleep {OPT['slp']}")
    a(f"buffer_load_dword v{OF}, v{OF+1}, {srd(WS)}, 0 offen sc1\ns_branch L_opoll")
    a.label("L_ordy")
    a("s_mov_b64 exec, -1")
    stamp(8)
    for k in range(8): oload(k)
    for k in range(8):
        a(f"s_waitcnt vmcnt({14-2*k})" + (f" lgkmcnt({min(12,4*(7-k))})" if k >= 4 else ""))
        ocheck(k)
        a(f"s_bitset1_b32 s{sE}, {k}\ns_cbranch_vccnz L_op{k}\ns_bitset0_b32 s{sE}, {k}")
        omm(k)
        a.label(f"L_op{k}")
        if k < 4: wread(W8+8*k, 2048*(k+4))
    a.label("L_orep")
    a(f"s_cmp_eq_u32 s{sE}, 0\ns_cbranch_scc1 L_odone")
    if OPT['bound']: a("s_add_u32 s63, s63, 1\ns_cmp_gt_u32 s63, 100000\ns_cbranch_scc1 L_odone")
    if OPT['slp']: a(f"s_sleep {OPT['slp']}")
    for k in range(8):
        a(f"s_bitcmp1_b32 s{sE}, {k}\ns_cbranch_scc0 L_oi{k}")
        oload(k)
        a.label(f"L_oi{k}")
    a("s_waitcnt vmcnt(0)")
    for k in range(8):
        a(f"s_bitcmp1_b32 s{sE}, {k}\ns_cbranch_scc0 L_oq{k}")
        wread(W8+8*(k % 4), 2048*k)
        ocheck(k)
        a(f"s_nop 0\ns_cbranch_vccnz L_oq{k}\ns_bitset0_b32 s{sE}, {k}\ns_waitcnt lgkmcnt(0)")
        omm(k)
        a.label(f"L_oq{k}")
    a("s_branch L_orep")
    a.label("L_odone")
    stamp(9)
    for ct in range(2):
        for q in range(4):
            a(f"v_xor_b32 v{64+4*ct+q}, {(8*ct+2*q)*16}, v{vWa}")
    a("s_nop 1")
    for ct in range(2):
        for tt in range(2):
            for q in range(4):
                a(f"ds_write_b128 v{64+4*ct+q}, {vr(GA+32*tt+16*ct+4*q,4)} offset:{8192*tt}")
    a("s_waitcnt lgkmcnt(0)\ns_barrier")
    stamp(10)

def epilogue():
    a.label("L_end")
    if OPT['prof']:
        a(f"s_memtime {sr(sPR+22,2)}\ns_memrealtime {sr(sPR+26,2)}\ns_waitcnt lgkmcnt(0)")
        for i in range(14): a(f"v_writelane_b32 v1, s{sPR+2*i}, {i}")
        a(f"""s_mul_i32 s{sA}, s2, 12
s_add_u32 s{sA}, s{sA}, s{sW}
s_lshl_b32 s{sA}, s{sA}, 6
s_add_u32 s{sA}, s{sA}, {PRB}
v_lshlrev_b32 v2, 2, v{vL}
s_mov_b64 exec, 0x3fff
buffer_store_dword v1, v2, {srd(WS)}, s{sA} offen""")
    a.label("L_exit")
    a("s_endpgm")

prologue(); role_kv(); role_q(); epilogue()
probs = check(a.lines)
for p in probs: print(p, file=sys.stderr)
hdr = f"""; fused gate / QKV / attention / FFN / output kernel (generated by gen/gen.py)
; @launch grid=(256,1,1) block=(768,1,1) lds=163840
.amdgcn_target "amdgcn-amd-amdhsa--gfx950"
.text
.globl {NAME}_kernel
.p2align 8
.type {NAME}_kernel,@function
{NAME}_kernel:
"""
ftr = f""".section .rodata,"a"
.p2align 6
.amdhsa_kernel {NAME}_kernel
  .amdhsa_next_free_vgpr 168
  .amdhsa_next_free_sgpr 102
  .amdhsa_accum_offset 168
  .amdhsa_group_segment_fixed_size 0
  .amdhsa_kernarg_size 96
  .amdhsa_user_sgpr_count 2
  .amdhsa_user_sgpr_kernarg_segment_ptr 1
  .amdhsa_system_sgpr_workgroup_id_x 1
.end_amdhsa_kernel
"""
open(sys.argv[1], "w").write(hdr + a.text() + ftr)
```

```python
import sys, os
sys.path.insert(0, os.path.dirname(os.path.abspath(__file__)))
from asmlib import Asm, vr, sr, check
NAME = "gated_mix__softmax_full_mha__dense_activation_squared_relu__prompt"
OPT = dict(prof=0, prio=3, forcefb=0, bound=0, map=0, aprio=8, rot=10, late=1, pipe=1, nof2=0, f2s=1, ns=3, sig=1, gpre=0, prio2=1, w1s=0, hl=0, gdot=0, w1p=6788, kvi=1, m23=1, sg0=1, qb=1, fill=1, pf=0, ib=1, qp=1, slp=1, prio3=0, clr=2, cpf=0, cps=10)
for a_ in sys.argv[2:]:
    k, v = a_.split("="); OPT[k] = int(v)

X, WQKV, W1, W2, WO, B1, B2, GW, OUT, DBG, WS = 4, 8, 12, 16, 20, 24, 28, 32, 36, 40, 44
sW, sHP, sRB, sST, sTT = 48, 49, 50, 51, 52
sA, sB, sC, sD, sE, sF = 53, 54, 55, 56, 57, 58
sLD = 59
sVM = 60
sCNT = 62
sPR = 64
KVB, HB, OB, PRB = 1 << 20, 8 << 20, 16 << 20, 32 << 20
NS = OPT['ns']; SL = 28672
def XS(i): return SL*(i % NS)
def WSL(i): return SL*(i % NS) + 16384
W1P = {5: [(4, 3*SL), (5, 4*SL), (6, 0), (7, SL)], 4: [(5, 4*SL), (5, 0), (6, SL), (7, 2*SL)],
       3: [(6, 3*SL), (6, 4*SL), (6, 2*SL), (7, 0)]}[NS]
W1P = [(max(st, int(str(OPT['w1p'])[d])), b) for d, (st, b) in enumerate(W1P)]
assert OPT['sg0'] or max(st for st, b in W1P) - 8 < OPT['sig']
WOL = 55296
RING = 120832
QST = 153600
GWL = 161792
B1L = 162816
GL = 163072
FLG = 163584
FP = [WOL+16384*p for p in range(4)]
ACC, WF, vXA, vWA, vG0, vG1, vG2, vL, vT0, vT1 = 128, 144, 160, 161, 162, 163, 164, 165, 166, 167
QSC = 0x3eb8aa3b

a = Asm()
NL = chr(10)
nstamp = [0]
def stamp2(i):
    if OPT['prof'] == 2: a(f"s_memtime {sr(sPR+2*i,2)}")
def stamp3(i):
    if OPT['prof'] == 3: a(f"s_memtime {sr(sPR+2*i,2)}")
def stamp(i):
    if OPT['prof'] == 1 or (OPT['prof'] and i == 0):
        a(f"s_memtime {sr(sPR+2*i,2)}")
def srd(s): return sr(s, 4)
def spin(L, D, slp):
    if OPT['bound']:
        a(f"s_add_u32 s63, s63, 1\ns_cmp_gt_u32 s63, 100000\ns_cbranch_scc1 {D}")
    a(f"s_sleep {slp}\ns_branch {L}")

def rot8(p):
    t = f"s_add_u32 s{sA}, s{sRB}, s{sHP}{NL}s_and_b32 s{sA}, s{sA}, 3{NL}s_lshl_b32 s{sST}, s{sA}, 1"
    if p == 3: return f"s_add_u32 s{sA}, s{sRB}, s{sHP}{NL}s_and_b32 s{sA}, s{sA}, 1{NL}s_lshl_b32 s{sA}, s{sA}, 2{NL}s_and_b32 s{sB}, s2, 3{NL}s_add_u32 s{sST}, s{sA}, s{sB}"
    if p: t += f"{NL}s_bfe_u32 s{sA}, s2, {0x10002 if p == 1 else 0x10000}{NL}s_add_u32 s{sST}, s{sST}, s{sA}"
    return t
KOFF = {X:0,WQKV:8,GW:64,B1:40,WS:88,W1:32,DBG:80,WO:16,W2:48,B2:56,OUT:72}
KSZ = {X:2097152,WQKV:1572864,W1:1409024,W2:1409024,WO:524288,B1:2752,B2:1024,GW:1024,OUT:2097152,DBG:256,WS:268435456}
def kload(ss):
    for s in ss: a(f"s_load_dwordx2 {sr(s,2)}, s[0:1], {KOFF[s]}")
def kconst(ss):
    for s in ss: a(f"s_mov_b32 s{s+2}, {KSZ[s]}\ns_mov_b32 s{s+3}, " + ("0x20000" if s == X or OPT['cpf'] != 9 else f"s{X+3}"))
def deferred():
    if OPT['cpf'] == 9: kload((DBG,W1,WO,W2,B2,OUT)); kconst((DBG,W1,WO,W2,B2,OUT))
def deferred_wait():
    if OPT['cpf'] == 9: a("s_waitcnt lgkmcnt(0)")
def prologue():
    if OPT['cpf'] == 9:
        a("s_lshr_b32 s3, s2, 8\ns_cbranch_scc1 L_exit")
        kload((X,GW))
        a("s_getpc_b64 s[96:97]")
        a.label("L_pc0")
        a(f"""v_cmp_gt_u32 vcc, 64, v0
s_lshl_b32 s98, s2, 4
s_cbranch_vccz L_nopf
v_lshl_add_u32 v145, v0, {OPT['cps']}, s98
v_min_u32 v145, L_end-L_pc0, v145
global_load_dword v144, v145, s[96:97]""")
        a.label("L_nopf")
        kload((WQKV,B1,WS))
    else:
        a(f"s_cmp_ge_u32 s2, 256\ns_cbranch_scc1 L_exit")
        kload((X,WQKV,GW,B1,WS,W1,DBG,WO,W2,B2,OUT))
    if OPT['cpf'] in (1,2,3,4,5):
        G = OPT['cpf']
        a("s_getpc_b64 s[96:97]")
        a.label("L_pc0")
        a(f"""v_cmp_gt_u32 vcc, 64, v0
s_bfe_u32 s98, s2, {3 | (G << 16)}
s_cbranch_vccz L_nopf
v_lshlrev_b32 v145, {G}, v0
v_add_u32 v145, s98, v145
v_lshlrev_b32 v145, 7, v145
v_min_u32 v145, L_end-L_pc0, v145
global_load_dword v144, v145, s[96:97]""")
        a.label("L_nopf")
    stamp(0)
    if OPT['prof']: a(f"s_memrealtime {sr(sPR+24,2)}")
    a(f"v_lshrrev_b32 v1, 6, v0\nv_and_b32 v{vL}, 63, v0")
    kconst((X,WQKV,GW,B1,WS) if OPT['cpf'] == 9 else (X,WQKV,W1,W2,WO,B1,B2,GW,OUT,DBG,WS))
    a(f"v_readfirstlane_b32 s{sW}, v1")
    a(f"""s_and_b32 s{sA}, s2, 3
s_lshl_b32 s{sA}, s{sA}, 2
s_bfe_u32 s{sB}, s2, 0x20003
s_add_u32 s{sRB}, s{sA}, s{sB}
s_bfe_u32 s{sA}, s2, 0x10002
s_lshr_b32 s{sB}, s2, 5
s_lshl_b32 s{sB if OPT['map'] else sA}, s{sB if OPT['map'] else sA}, {1 if OPT['map'] else 3}
s_add_u32 s{sHP}, s{sA}, s{sB}
{["s_mov_b32 s%d, 0"%sST, "s_and_b32 s%d, s%d, 7"%(sST,sHP), "s_and_b32 s%d, s%d, 6"%(sST,sHP),
"s_lshl_b32 s%d, s%d, 1"%(sA,sRB)+NL+"s_add_u32 s%d, s%d, s%d"%(sA,sA,sHP)+NL+"s_and_b32 s%d, s%d, 7"%(sST,sA),
"s_lshl_b32 s%d, s%d, 1"%(sA,sRB)+NL+"s_and_b32 s%d, s%d, 7"%(sST,sA), "s_and_b32 s%d, s%d, 4"%(sST,sHP), "s_and_b32 s%d, s2, 7"%sST,
"s_lshr_b32 s%d, s2, 3"%sA+NL+"s_and_b32 s%d, s%d, 1"%(sA,sA)+NL+"s_lshl_b32 s%d, s%d, 2"%(sA,sA)+NL+"s_add_u32 s%d, s%d, s2"%(sA,sA)+NL+"s_and_b32 s%d, s%d, 7"%(sST,sA),
rot8(0), rot8(1), rot8(2), rot8(3)][OPT['rot']]}
s_and_b32 s{sTT}, s{sW}, 3
s_mov_b32 s{sVM}, 0xffff
s_mov_b32 s{sVM+1}, 0xffff""")
    if OPT['bound']: a("s_mov_b32 s63, 0")
    a(f"""v_and_b32 v1, 31, v{vL}
v_lshrrev_b32 v2, 5, v{vL}
v_bfe_u32 v3, v{vL}, 1, 3
v_xor_b32 v3, v3, v2
v_lshlrev_b32 v3, 4, v3
v_lshl_add_u32 v3, v1, 7, v3
s_lshl_b32 s{sA}, s{sTT}, 12
v_add_u32 v{vXA}, s{sA}, v3""")
    if OPT['qp']:
        a(f"s_cmp_lt_u32 s{sW}, 8\ns_cbranch_scc1 L_roleKV")
        role_q_head()
        a.label("L_roleKV")
    else: a(f"s_cmp_ge_u32 s{sW}, 8\ns_cbranch_scc1 L_roleQ")
def wa64(t0, t1, base_s, stride=64):
    a(f"""v_lshrrev_b32 v{t0}, 5, v{vL}
v_bfe_u32 v{t1}, v{vL}, 2, 2
v_lshl_add_u32 v{t0}, v{t0}, 3, v{t1}
v_mul_u32_u24 v{t0}, {stride}, v{t0}
v_add_u32 v{t0}, s{base_s}, v{t0}
v_bfe_u32 v{t1}, v{vL}, 4, 1
v_lshl_add_u32 v{t0}, v{t1}, 5, v{t0}
v_and_b32 v{t1}, 3, v{vL}
v_lshl_add_u32 v{vWA}, v{t1}, 3, v{t0}""")

def chunk_off(dst, i, mul):
    a(f"s_add_u32 s{dst}, s{sST}, {i}\ns_and_b32 s{dst}, s{dst}, 7\ns_mul_i32 s{dst}, s{dst}, {mul}")
def capture(f, *args):
    n = len(a.lines); f(*args); out = a.lines[n:]; del a.lines[n:]
    groups = [[]]
    for l in out:
        groups[-1].append(l)
        if l.startswith("buffer_load"): groups.append([])
    return ["\n".join(g) for g in groups if g]
def load_x(i):
    chunk_off(sA, i, 128)
    a(f"s_add_u32 m0, s{sLD}, {XS(i)}\ns_nop 0\nbuffer_load_dwordx4 v{vG0}, {srd(X)}, s{sA} offen lds")
    a(f"s_add_u32 m0, s{sLD}, {XS(i)+1024}\ns_mul_i32 s{sB}, s{sA}, 1536\nbuffer_load_dwordx4 v{vG1}, {srd(X)}, s{sA} offen lds")
    a(f"s_add_u32 m0, s{sD}, {WSL(i)}\ns_nop 0\nbuffer_load_dwordx4 v{vG2}, {srd(WQKV)}, s{sB} offen lds")
def load_wq(i):
    chunk_off(sA, i, 64*3072)
    a(f"s_add_u32 m0, s{sLD}, {WSL(i)+8192}\ns_nop 0\nbuffer_load_dwordx4 v{vG0}, {srd(WQKV)}, s{sA} offen lds")
def load_w1(c, vg):
    chunk_off(sA, c, 64*2752)
    a(f"s_add_u32 m0, s{sD}, {W1P[c//2][1]+12288*(c%2)}\ns_nop 0\nbuffer_load_dwordx4 v{vg}, {srd(W1)}, s{sA} offen lds")
def w1_loads(cs, vg=vG0): return sum((capture(load_w1, c, vg) for c in cs), [])
def step_loads(i, vm, ldf, nper, vg=vG0):
    out = []
    if i + NS - 1 < 8:
        out += capture(ldf, i + NS - 1); vm.add(('s', i + NS - 1), nper)
    if i == W1P[0][0] and vg == vG0: w1_addr(vG0)
    for d in range(4):
        if W1P[d][0] == i:
            out += w1_loads((2*d, 2*d+1), vg); vm.add(('w', d), 2)
    return out
def d_phase(d, vm, vg, kvrole, sigcode, pre=None):
    done = vm.done
    if OPT['sg0']:
        need = d not in done
        if need:
            last = 3 if (d == 2 and OPT['m23']) else d
            vm.wait(('w', last)); done.update(range(d, last+1))
        if pre: pre()
        stamp3(2+2*d)
        if need and not (d == 0 and not kvrole and OPT['qb']): a("s_barrier")
        if d == 0 and kvrole:
            vm.wait('kv'); sigcode()
        stamp3(3+2*d)
        out = []
        for e in range(4):
            if W1P[e][0] == 8 + d:
                out += w1_loads((2*e, 2*e+1), vg); vm.add(('w', e), 2)
        return out
    if d == OPT['sig'] and kvrole:
        vm.wait('kv'); sigcode()
    need = d not in done
    if need:
        ws = [d]
        if d == OPT['sig']: ws = [e for e in range(d, 4) if W1P[e][0] <= 7] or [d]
        if d > OPT['sig'] and d == 2 and W1P[3][0] <= W1P[2][0] and OPT['m23']: ws = [2, 3]
        last = max(ws + [d])
        if not (kvrole and d == OPT['sig'] and W1P[last][0] <= 7):
            if kvrole and d > OPT['sig'] and vm.cnt(('w', last)) == 0:
                L = a.newlabel("w")
                a(f"s_waitcnt vmcnt(1)\ns_cmp_eq_u32 s{sE}, 2\ns_cbranch_scc1 {L}\ns_waitcnt vmcnt(0)"); a.label(L)
            else: vm.wait(('w', last))
        done.update(range(d, last+1))
    if pre: pre()
    stamp3(2+2*d)
    if need and not (d == 0 and not kvrole and OPT['qb']): a("s_barrier")
    stamp3(3+2*d)
    out = []
    for e in range(4):
        if W1P[e][0] == 8 + d:
            out += w1_loads((2*e, 2*e+1), vg); vm.add(('w', e), 2)
    return out
class VM:
    def __init__(s): s.q = []; s.done = set()
    def cnt(s, tag): return len(s.q) - 1 - max(k for k, t in enumerate(s.q) if t == tag)
    def add(s, tag, n=1): s.q += [tag]*n
    def wait(s, tag):
        n = len(s.q) - 1 - max(k for k, t in enumerate(s.q) if t == tag)
        a(f"s_waitcnt vmcnt({n})")
class Base:
    def __init__(s, reg, adj=0): s.reg = reg; s.adj = adj
    def off(s, o, span):
        if o - s.adj < 0 or o - s.adj + span > 65535:
            a(f"v_add_u32 v{s.reg}, {(o - s.adj) & 0xffffffff}, v{s.reg}"); s.adj = o
        return o - s.adj
def w_addr():
    a(f"""v_lshrrev_b32 v{vT0}, 2, v{vL}
s_lshl_b32 s{sA}, s{sTT}, 4
v_add_u32 v{vT0}, s{sA}, v{vT0}
v_and_b32 v{vT1}, 3, v{vL}
s_lshl_b32 s{sA}, s{sHP}, 6
v_mul_u32_u24 v{vT0}, 3072, v{vT0}
v_lshl_add_u32 v{vT1}, v{vT1}, 4, s{sA}
v_add_u32 v{vG0}, v{vT0}, v{vT1}""")
def w1_addr(dst):
    a(f"""s_lshl_b32 s{sA}, s{sW}, 6
v_add_u32 v{vT0}, s{sA}, v{vL}
v_mul_u32_u24 v{vT1}, 43691, v{vT0}
s_mul_i32 s{sA}, s{sHP}, 192
v_lshrrev_b32 v{vT1}, 19, v{vT1}
s_movk_i32 s{sB}, 2752
v_mad_i32_i24 v{vT0}, v{vT1}, -12, v{vT0}
v_lshl_add_u32 v{vT0}, v{vT0}, 4, s{sA}
v_min_u32 v{vT0}, 2736, v{vT0}
v_mad_u32_u24 v{dst}, v{vT1}, s{sB}, v{vT0}""")

def w1_prefetch():
    st = 128 if OPT['pf'] == 1 else 64
    a(f"""s_lshr_b32 s{sA}, s2, 3
s_lshl_b32 s{sA}, s{sA}, 3
s_add_u32 s{sA}, s{sA}, s{sW}
s_mul_i32 s{sA}, s{sA}, 5504
s_lshr_b32 s{sB}, s{sHP}, 3
s_mul_i32 s{sB}, s{sB}, 1216
s_add_u32 s{sA}, s{sA}, s{sB}""")
    for r in range(2):
        offs = list(range(0, 1536, 64)) if st == 64 else ([0] + list(range(64, 1536, 128)) if r else list(range(0, 1536, 128)) + [1532])
        for o in offs:
            a(f"s_buffer_load_dword s{sCNT}, {srd(W1)}, s{sA} offset:{2752*r+o}")
def qkv_step(i, role, bx, bw, ld=()):
    ld = list(ld)
    if not OPT['late']:
        for g in ld: a(g)
        ld = []
    wo = bw.off(WSL(i), 8192); xo = bx.off(XS(i), 0)
    rb_ = 64 if role == 'Q' else 128
    def xr(s):
        a(f"ds_read_b128 {vr(16*i+4*s,4)}, v{vXA} offset:{xo}")
        a(f"v_xor_b32 v{vXA}, {32 if s%2==0 else 96}, v{vXA}")
    def wr(s):
        a(f"ds_read_b64_tr_b16 {vr(WF+4*s,2)}, v{vWA} offset:{wo+16*rb_*s}")
        a(f"ds_read_b64_tr_b16 {vr(WF+4*s+2,2)}, v{vWA} offset:{wo+16*rb_*s+4*rb_}")
    def mf(j, s):
        c = "0" if (j == 0 and s == 0) else vr(ACC,16)
        A, B = (vr(16*j+4*s,4), vr(WF+4*s,4)) if role == 'V' else (vr(WF+4*s,4), vr(16*j+4*s,4))
        a(f"v_mfma_f32_32x32x16_bf16 {vr(ACC,16)}, {A}, {B}, {c}")
    gd = role == 'Q' and OPT['gdot']
    def dots(j, s, g):
        for r in range(4): a(f"v_dot2c_f32_bf16 v{vT1 if r%2 else vG1}, v{16*j+4*s+r}, v{g+r}")
    def gr(j, s, g): a(f"ds_read_b128 {vr(g,4)}, v{vT0} offset:{128*j+32*s}")
    if OPT['pipe']:
        for s in range(4):
            if i > 0: mf(i-1, s)
            if gd and i > 0: dots(i-1, s, 16*i+4*s)
            wr(s); xr(s)
            if gd and i < 7: gr(i, s, 16*i+16+4*s)
            for _ in range((len(ld) + 3 - s)//(4 - s)): a(ld.pop(0))
        if i < 7: a("s_waitcnt lgkmcnt(0)")
        else:
            for s in range(4):
                a(f"s_waitcnt lgkmcnt({9-(2 if gd else 3)*s})")
                mf(7, s)
                if gd: gr(7, s, WF+4*s)
            if gd:
                for s in range(4):
                    a(f"s_waitcnt lgkmcnt({3-s})")
                    dots(7, s, WF+4*s)
        return
    for s in range(4):
        xr(s); wr(s)
    for s in range(4):
        a(f"s_waitcnt lgkmcnt({9-3*s})")
        mf(i, s)
        for _ in range((len(ld) + 3 - s)//(4 - s)): a(ld.pop(0))
def pack(dst, src, n):
    for j in range(n):
        a(f"v_cvt_pk_bf16_f32 v{dst+j}, v{src+2*j}, v{src+2*j+1}")
def b1_init(ct_s):
    a(f"""v_lshrrev_b32 v{vT0}, 5, v{vL}
v_lshlrev_b32 v{vT0}, 3, v{vT0}
s_lshl_b32 s{sA}, s{ct_s}, 6
s_add_u32 s{sA}, s{sA}, {B1L}
v_add_u32 v{vT0}, s{sA}, v{vT0}""")
    for q in range(4):
        a(f"ds_read_b64 {vr(WF+8+2*q,2)}, v{vT0} offset:{16*q}")
def b1_fin():
    a("s_waitcnt lgkmcnt(0)")
    for q in range(8):
        a(f"v_lshlrev_b32 v{ACC+2*q}, 16, v{WF+8+q}\nv_and_b32 v{ACC+2*q+1}, 0xffff0000, v{WF+8+q}")
def ffn1_pair(d, bw, ld=(), fill=None):
    ld = list(ld)
    if not OPT['late']:
        for g in ld: a(g)
        ld = []
    base = bw.off(W1P[d][1], 22400)
    def rd(k):
        c, s = k//4, k % 4
        o = base + 12288*c + 3072*s
        r = WF+4*(k % 4)
        a(f"ds_read_b64_tr_b16 {vr(r,2)}, v{vWA} offset:{o}\nds_read_b64_tr_b16 {vr(r+2,2)}, v{vWA} offset:{o+768}")
    for k in range(4): rd(k)
    for k in range(8):
        a(f"s_waitcnt lgkmcnt({6 if k<5 else 2*(7-k)})")
        a(f"v_mfma_f32_32x32x16_bf16 {vr(ACC,16)}, {vr(WF+4*(k%4),4)}, {vr(32*d+4*k,4)}, {vr(ACC,16)}")
        if k < 4: rd(k+4)
        for _ in range((len(ld) + 7 - k)//(8 - k)): a(ld.pop(0))
        if fill:
            for x in fill[k]: a(x)
def ffn1_epi(tmp):
    for j in range(16): a(f"v_max_f32 v{ACC+j}, 0, v{ACC+j}")
    for j in range(8): a(f"v_pk_mul_f32 {vr(ACC+2*j,2)}, {vr(ACC+2*j,2)}, {vr(ACC+2*j,2)}")
    pack(tmp, ACC, 8)
def h_store(tmp, ct_s, av):
    L = a.newlabel("hs")
    a(f"""s_mul_i32 s{sA}, s{sHP}, 3
s_add_u32 s{sA}, s{sA}, s{ct_s}
s_cmp_ge_u32 s{sA}, 43
s_cbranch_scc1 {L}
s_lshl_b32 s{sA}, s{sA}, 1
s_lshl_b32 s{sB}, s{sRB}, 2
s_add_u32 s{sB}, s{sB}, s{sTT}
s_mul_i32 s{sB}, s{sB}, 86
s_add_u32 s{sA}, s{sA}, s{sB}
s_lshl_b32 s{sA}, s{sA}, 10
s_add_u32 s{sA}, s{sA}, {HB}
v_lshlrev_b32 v{av}, 4, v{vL}
buffer_store_dwordx4 {vr(tmp,4)}, v{av}, {srd(WS)}, s{sA} offen sc1
buffer_store_dwordx4 {vr(tmp+4,4)}, v{av}, {srd(WS)}, s{sA} offen offset:1024 sc1""")
    a.label(L)
def poll(cnt_s, val_v, adr_v, target=16):
    L = a.newlabel("poll"); D = a.newlabel("polld")
    a(f"v_mov_b32 v{adr_v}, 0\ns_mov_b64 exec, 1")
    a.label(L)
    a(f"""buffer_load_dword v{val_v}, v{adr_v}, {srd(WS)}, s{cnt_s} offen sc1
s_waitcnt vmcnt(0)
v_cmp_eq_u32 vcc, {target}, v{val_v}
s_nop 0
s_cbranch_vccnz {D}""")
    spin(L, D, 1)
    a.label(D)
    a("s_mov_b64 exec, -1")
def signal(cnt_s, v0_, v1_):
    a(f"""v_mov_b32 v{v0_}, 0
v_mov_b32 v{v1_}, 1
s_mov_b64 exec, 1
buffer_atomic_add v{v1_}, v{v0_}, {srd(WS)}, s{cnt_s} offen sc1
s_mov_b64 exec, -1""")

def role_kv():
    a(f"""v_lshrrev_b32 v1, 3, v{vL}
s_lshl_b32 s{sA}, s{sRB}, 7
s_lshl_b32 s{sB}, s{sW}, 4
s_add_u32 s{sA}, s{sA}, s{sB}
v_add_u32 v4, s{sA}, v1
v_lshlrev_b32 v4, 10, v4
v_and_b32 v2, 7, v{vL}
v_lshrrev_b32 v3, 4, v{vL}
v_xor_b32 v5, v2, v3
v_lshl_add_u32 v{vG0}, v5, 4, v4
v_xor_b32 v{vG1}, 64, v{vG0}
v_add_u32 v{vG1}, 8192, v{vG1}
s_lshl_b32 s{sLD}, s{sW}, 11
s_lshl_b32 s{sD}, s{sW}, 10
s_lshl_b32 s{sA}, s{sW}, 3
v_add_u32 v1, s{sA}, v1
v_mul_u32_u24 v1, 3072, v1
v_and_b32 v3, 1, v3
v_lshlrev_b32 v3, 2, v3
v_xor_b32 v2, v2, v3
v_lshl_add_u32 v1, v2, 4, v1
s_and_b32 s{sE}, s{sHP}, 1
s_lshl_b32 s{sA}, s{sE}, 10
s_lshr_b32 s{sF}, s{sHP}, 1
s_lshl_b32 s{sB}, s{sF}, 7
s_add_u32 s{sA}, s{sA}, s{sB}
s_add_u32 s{sA}, s{sA}, 1024
v_add_u32 v{vG2}, s{sA}, v1
s_lshr_b32 s{sC}, s{sW}, 2
s_waitcnt lgkmcnt(0)""")
    stamp2(1)
    for i in range(NS-1):
        if i and OPT['ib'] >= i: a('s_barrier')
        load_x(i)
    stamp2(2)
    deferred()
    a(f"""v_lshrrev_b32 v1, 5, v{vL}
v_bfe_u32 v2, v{vL}, 2, 2
v_lshl_add_u32 v1, v1, 3, v2
v_lshlrev_b32 v1, 7, v1
v_bfe_u32 v2, v{vL}, 4, 1
v_lshl_add_u32 v1, v2, 5, v1
v_and_b32 v2, 3, v{vL}
v_lshl_add_u32 v1, v2, 3, v1
v_bfe_u32 v2, v{vL}, 3, 1
v_xor_b32 v2, s{sC}, v2
v_lshl_add_u32 v1, v2, 6, v1
v_add_u32 v{vWA}, 16384, v1""")
    if OPT['pf']: w1_prefetch()
    deferred_wait()
    a(f"s_cmp_lg_u32 s{sE}, 0\ns_cbranch_scc1 L_roleV")
    for role in "KV":
        if role == 'V': a.label("L_roleV")
        vm = VM(); bx = Base(vXA); bw = Base(vWA, 16384)
        for i in range(NS-1): vm.add(('s', i), 3)
        for i in range(8):
            vm.wait(('s', i))
            if i == 0: stamp2(3)
            a("s_barrier")
            if i in (0,1,2,4,7): stamp2({0:4,1:6,2:7,4:8,7:9}[i])
            if i == 0: stamp(1)
            qkv_step(i, role, bx, bw, step_loads(i, vm, load_x, 3))
            if i in (0,7): stamp2(5 if i == 0 else 10)
        vm.add('kv', 3)
        stamp(2); stamp3(1)
        b1_init(sC)
        a(f"v_mov_b32 v{vG1}, 0\ns_mov_b64 exec, 1\nbuffer_load_dword v{vXA}, v{vG1}, {srd(DBG)}, 0 offen sc1\ns_mov_b64 exec, -1")
        a(f"""s_lshl_b32 s{sA}, s{sF}, 1
s_add_u32 s{sA}, s{sA}, s{sC}
s_lshl_b32 s{sA}, s{sA}, 18
s_lshl_b32 s{sB}, s{sRB}, 2
s_add_u32 s{sB}, s{sB}, s{sTT}
s_lshl_b32 s{sB}, s{sB}, 11
s_add_u32 s{sA}, s{sA}, s{sB}
s_add_u32 s{sA}, s{sA}, {KVB}""")
        if role == 'K':
            a(f"""v_and_b32 v{vG2}, 0x33, v{vL}
v_bfe_u32 v{vG1}, v{vL}, 2, 1
v_lshl_add_u32 v{vG2}, v{vG1}, 3, v{vG2}
v_bfe_u32 v{vG1}, v{vL}, 3, 1
v_lshl_add_u32 v{vG2}, v{vG1}, 2, v{vG2}
v_lshlrev_b32 v{vG2}, 4, v{vG2}
s_add_u32 s{sB}, s{sA}, 131072""")
            pack(WF, ACC, 8)
            a(f"buffer_store_dwordx4 {vr(WF,4)}, v{vG2}, {srd(WS)}, s{sA} offen sc1")
            a(f"buffer_store_dwordx4 {vr(WF+4,4)}, v{vG2}, {srd(WS)}, s{sB} offen sc1")
        else:
            a(f"""v_and_b32 v{vG2}, 15, v{vL}
v_lshlrev_b32 v{vG2}, 4, v{vG2}
v_lshrrev_b32 v{vG1}, 5, v{vL}
v_lshl_add_u32 v{vG2}, v{vG1}, 8, v{vG2}
v_bfe_u32 v{vG1}, v{vL}, 4, 1
v_lshl_add_u32 v{vG2}, v{vG1}, 17, v{vG2}
s_nop 0""")
            pack(WF, ACC, 8)
            a(f"buffer_store_dwordx4 {vr(WF,4)}, v{vG2}, {srd(WS)}, s{sA} offen offset:1024 sc1")
            a(f"buffer_store_dwordx4 {vr(WF+4,4)}, v{vG2}, {srd(WS)}, s{sA} offen offset:1536 sc1")
        if role == 'K': a("s_branch L_kvffn")
    a.label("L_kvffn")
    a(f"s_lshl_b32 s{sA}, s{sC}, 6")
    wa64(vT0, vT1, sA, 192)
    bw = Base(vWA)
    b1_fin()
    def sigcode():
        a(f"""v_mov_b32 v{vT0}, {FLG+64}
v_mov_b32 v{vT1}, 1
s_mov_b64 exec, 1
ds_add_rtn_u32 v{vT0}, v{vT0}, v{vT1}
s_waitcnt lgkmcnt(0)
v_cmp_eq_u32 vcc, 7, v{vT0}
s_nop 0
s_cbranch_vccz L_s1done""")
        a.label("L_boot")
        a(f"""v_cmp_eq_u32 vcc, 1, v{vXA}
s_nop 0
s_cbranch_vccnz L_bootok
v_mov_b32 v{vT0}, 0
buffer_load_dword v{vXA}, v{vT0}, {srd(DBG)}, 0 offen sc1
s_waitcnt vmcnt(0)""")
        spin("L_boot", "L_bootok", 1)
        a.label("L_bootok")
        a(f"s_lshl_b32 s{sA}, s{sF}, 8\nv_mov_b32 v{vT0}, 0\nbuffer_atomic_add v{vT1}, v{vT0}, {srd(WS)}, s{sA} offen sc1\ns_mov_b32 s{sE}, 2")
        a.label("L_s1done")
        a("s_mov_b64 exec, -1")
    for d in range(4):
        if OPT['fill']: ffn1_pair(d, bw, d_phase(d, vm, vG0, True, sigcode), att_fill(d))
        else: ffn1_pair(d, bw, d_phase(d, vm, vG0, True, sigcode, att_setup if d == 3 else None))
    attention()

KV = [0, 12, 24, 36]; QF = 48; OA = 64; SX, SY = 128, 144
vK, vV, vI = 160, 162, 163
def kv_load(b):
    a(f"""buffer_load_dwordx4 {vr(KV[b],4)}, v{vK}, {srd(WS)}, s{sD} offen sc1
s_mov_b64 exec, {sr(sVM,2)}
buffer_load_dwordx4 {vr(KV[b]+4,4)}, v{vV}, {srd(WS)}, s{sD} offen offset:1024 sc1
buffer_load_dwordx4 {vr(KV[b]+8,4)}, v{vV}, {srd(WS)}, s{sD} offen offset:1536 sc1
s_mov_b64 exec, -1
s_add_u32 s{sD}, s{sD}, 8192
s_and_b32 s{sD}, s{sD}, 0x1ffff""")
def qk(dst, kb, q, c="0"):
    a(f"v_mfma_f32_32x32x16_bf16 {vr(dst,16)}, {vr(KV[kb],4)}, {vr(QF+4*q,4)}, {c}")
def pv(q, kb, s, src):
    a(f"v_smfmac_f32_32x32x32_bf16 {vr(OA+16*q,16)}, {vr(KV[kb]+4+4*s,4)}, {vr(src+8*s,8)}, v{vI}")
def ex(r): a(f"v_exp_f32 v{r}, v{r}")
def q_frags():
    for j in range(4):
        a(f"""s_add_u32 s{sA}, s{sTT}, {j}
s_and_b32 s{sA}, s{sA}, 3
s_lshl_b32 s{sB}, s{sC}, 2
s_add_u32 s{sA}, s{sA}, s{sB}
s_lshl_b32 s{sA}, s{sA}, 10
s_add_u32 s{sA}, s{sA}, {QST}
v_lshl_add_u32 v{vT0}, v{vL}, 4, s{sA}
ds_read_b128 {vr(QF+4*j,4)}, v{vT0}""")
def kv_addr():
    a(f"""s_lshl_b32 s{sA}, s{sHP}, 1
s_add_u32 s{sA}, s{sA}, s{sC}
s_lshl_b32 s{sA}, s{sA}, 17
s_lshl_b32 s{sB}, s{sTT}, 11
s_add_u32 s{sA}, s{sA}, s{sB}
s_add_u32 s{sA}, s{sA}, {KVB}
v_lshl_add_u32 v{vK}, v{vL}, 4, s{sA}
v_and_b32 v{vV}, 15, v{vL}
v_lshl_add_u32 v{vV}, v{vV}, 4, s{sA}
v_lshrrev_b32 v{vT0}, 5, v{vL}
v_lshl_add_u32 v{vV}, v{vT0}, 8, v{vV}
v_mov_b32 v{vI}, 0xdddd
s_lshl_b32 s{sD}, s{sRB}, 13""")
def att_setup():
    q_frags(); kv_addr()
    for b in range(4):
        for j in range(8): a(f"v_mov_b32 v{KV[b]+4+j}, 0x3f803f80")
    for j in range(32): a(f"v_mov_b32 v{OA+j}, 0")
    a("s_waitcnt lgkmcnt(0)")
def att_fill(d):
    def spread(items, lo=0):
        out = [[] for _ in range(8)]; n = len(items)
        for j, x in enumerate(items): out[lo + j*(8-lo)//n].append(x)
        return out
    def mov2(r, val): return f"v_mov_b64 {vr(r,2)}, {val}" if val == 0 else f"v_mov_b32 v{r}, {val}\nv_mov_b32 v{r+1}, {val}"
    one = 0x3f803f80
    if d == 0: return None
    if d == 1: return spread([mov2(r, one) for r in (4,6,8,10,16,18,20,22,28,30)])
    if d == 2:
        it = [mov2(r, one) for r in (32,34,40,42,44,46)]
        n = len(a.lines); kv_addr(); ad = a.lines[n:]; del a.lines[n:]
        return spread(it + ad)
    out = spread([mov2(OA+2*j, 0) for j in range(16)])
    for k in range(1, 8): out[k] += [mov2(96+4*(k-1), 0), mov2(98+4*(k-1), 0)]
    n = len(a.lines); q_frags(); out[7] += a.lines[n:]; del a.lines[n:]
    return out
def attention():
    a(f"""s_lshl_b32 s{sA}, s{sW}, 2
s_add_u32 s{sA}, s{sA}, {FLG}
v_mov_b32 v{vG2}, s{sA}
v_mov_b32 v{vT1}, 1
s_mov_b32 s{sCNT}, 4""")
    a("s_nop 6")
    ffn1_epi(WF)
    if not OPT['hl']: h_store(WF, sC, vT0)
    a(f"""s_lshl_b32 s{sA}, s{sRB}, 2
s_add_u32 s{sA}, s{sA}, s{sTT}
s_lshl_b32 s{sA}, s{sA}, 5
s_lshl_b32 s{sB}, s{sHP}, 1
s_add_u32 s{sA}, s{sA}, s{sB}
s_add_u32 s{sA}, s{sA}, s{sC}
s_lshl_b32 s{sF}, s{sA}, 10
s_add_u32 s{sF}, s{sF}, {OB}""")
    for j in range(60 if OPT['fill'] else 32, 64, 2): a(f"v_mov_b64 {vr(OA+j,2)}, 0")
    for j in range(0, 8, 2): a(f"v_mov_b64 {vr(SY+8+j,2)}, 0")
    a("s_waitcnt lgkmcnt(0)")
    stamp(3)
    a("s_barrier")
    if OPT['aprio']: a("s_setprio 2")
    for b in range(OPT['kvi']): kv_load(b)
    stamp(4)
    a(f"s_waitcnt vmcnt({3*OPT['kvi']-3})")
    if not OPT['hl']: a(f"ds_write_b32 v{vG2}, v{vT1}")
    stamp(5); stamp3(10)
    qk(SX, 0, 0)
    for b in range(OPT['kvi'], 3): kv_load(b)
    if OPT['hl']: h_store(WF, sC, vT0)
    a("s_nop 7\ns_nop 3" if OPT['kvi'] == 3 else "s_nop 4" if OPT['kvi'] == 2 else "")
    a(".p2align 3")
    a.label("L_att")
    for kt in range(4):
        for q in range(4):
            Xr, Yr = (SX, SY) if q % 2 == 0 else (SY, SX)
            ex(Xr); ex(Xr+1)
            pv((q+3) % 4, kt if q else (kt+3) % 4, 1, Yr)
            if q == 0: kv_load((kt+3) % 4)
            for j in range(2, 5): ex(Xr+j)
            if q == 3:
                a("s_waitcnt vmcnt(6)")
                qk(Yr, (kt+1) % 4, 0)
                if kt == 1:
                    a(f"s_cmp_lg_u32 s{sCNT}, 4\ns_cbranch_scc1 L_ap1")
                    if OPT['hl']: a(f"ds_write_b32 v{vG2}, v{vT1}")
                    if OPT['aprio']: a("s_setprio 1")
                    a.label("L_ap1")
            else: qk(Yr, kt, q+1)
            for j in range(5, 10): ex(Xr+j)
            pv(q, kt, 0, Xr)
            if OPT['aprio'] and 4*kt+q == OPT['aprio']:
                a(f"s_cmp_lg_u32 s{sCNT}, 1\ns_cbranch_scc1 L_ap2\ns_setprio 0")
                a.label("L_ap2")
            if q == 3 and kt == 3: a(f"s_sub_u32 s{sCNT}, s{sCNT}, 1\ns_cmp_lg_u32 s{sCNT}, 0")
            for j in range(10, 16): ex(Xr+j)
    a("s_cbranch_scc1 L_att")
    a("s_nop 1")
    pv(3, 3, 1, SY)
    stamp(6)
    for j in range(1, 4):
        a(f"""s_add_u32 s{sA}, s{sTT}, {j}
s_and_b32 s{sA}, s{sA}, 3
s_lshl_b32 s{sB}, s{sC}, 2
s_add_u32 s{sA}, s{sA}, s{sB}
s_mul_i32 s{sA}, s{sA}, 6912
s_add_u32 s{sA}, s{sA}, {2304*(j-1)}
v_lshl_add_u32 v{SX+j}, v{vL}, 4, s{sA}
v_lshl_add_u32 v{SX+4+j}, v{vL}, 2, s{sA}""")
        if j == 3: a("s_nop 3")
    for j in range(1, 4):
        a(f"""ds_write_b128 v{SX+j}, {vr(OA+16*j,4)}
ds_write_b128 v{SX+j}, {vr(OA+16*j+4,4)} offset:1024
ds_write_b32 v{SX+4+j}, v{OA+16*j+8} offset:2048""")
    a(f"""s_mul_i32 s{sA}, s{sW}, 6912
v_lshl_add_u32 v{SX}, v{vL}, 4, s{sA}
v_lshl_add_u32 v{SX+4}, v{vL}, 2, s{sA}
v_and_b32 v{SX+8}, 31, v{vL}
s_lshl_b32 s{sA}, s{sTT}, 7
s_add_u32 s{sA}, s{sA}, {GL}
v_lshl_add_u32 v{SX+8}, v{SX+8}, 2, s{sA}
s_waitcnt lgkmcnt(0)
s_barrier""")
    stamp(7)
    P = OA+16
    for j in range(3):
        a(f"""ds_read_b128 {vr(P+16*j,4)}, v{SX} offset:{2304*j}
ds_read_b128 {vr(P+16*j+4,4)}, v{SX} offset:{2304*j+1024}
ds_read_b32 v{P+16*j+8}, v{SX+4} offset:{2304*j+2048}""")
    vg = SX+9
    a(f"ds_read_b32 v{vg}, v{SX+8}")
    a(f"v_lshlrev_b32 v{SX+10}, 4, v{vL}")
    for j in range(3):
        a(f"s_waitcnt lgkmcnt({7-3*j})")
        for r in range(9): a(f"v_add_f32 v{OA+r}, v{OA+r}, v{P+16*j+r}")
    t = SX+11
    a(f"v_mul_f32 v{t}, 0, v{OA}")
    for r in range(1, 8): a(f"v_fmac_f32 v{t}, 0, v{OA+r}")
    a(f"""v_add_f32 v{t}, v{t}, v{OA+8}
v_cmp_nle_f32 vcc, 0x2b800000, v{t}
v_cmp_nge_f32 s[{sA+1}:{sA+2}], v{t+1}, v{t}""".replace(f"v_cmp_nle", f"v_mov_b32 v{t+1}, 0x53800000\nv_cmp_nle"))
    a(f"s_nop 0\ns_or_b64 vcc, vcc, s[{sA+1}:{sA+2}]")
    a("s_cbranch_vccnz L_fb" if not OPT['forcefb'] else "s_branch L_fb")
    a.label("L_fbdone")
    a(f"v_rcp_f32 v{t}, v{OA+8}\ns_waitcnt lgkmcnt(0)\nv_mul_f32 v{t}, v{t}, v{vg}")
    for r in range(8): a(f"v_mul_f32 v{OA+r}, v{OA+r}, v{t}")
    pack(OA, OA, 4)
    for r in range(4): a(f"v_min_u32 v{OA+r}, -2, v{OA+r}")
    a(f"buffer_store_dwordx4 {vr(OA,4)}, v{SX+10}, {srd(WS)}, s{sF} offen sc1")
    R, Cc, A0, A1, A2, A3, OADR, BV, T = 16, 17, 18, 19, 20, 21, 22, 24, 32
    stamp(8)
    a(f"""v_lshrrev_b32 v{R}, 3, v{vL}
s_lshl_b32 s{sA}, s{sW}, 3
v_add_u32 v{R}, s{sA}, v{R}
v_and_b32 v{Cc}, 7, v{vL}
s_lshr_b32 s{sA}, s{sHP}, 1
s_lshl_b32 s{sA}, s{sA}, 7
v_lshl_add_u32 v{A0}, v{Cc}, 4, s{sA}
buffer_load_dwordx4 {vr(BV,4)}, v{A0}, {srd(B2)}, 0 offen
s_and_b32 s{sB}, s{sHP}, 1
s_lshl_b32 s{sB}, s{sB}, 6
v_add_u32 v{A1}, s{sB}, v{R}
v_lshlrev_b32 v{A2}, 2, v{A1}
v_add_u32 v{A2}, {GL}, v{A2}
ds_read_b32 v{vg}, v{A2}
s_lshl_b32 s{sB}, s{sRB}, 7
v_add_u32 v{A1}, s{sB}, v{A1}
v_lshl_add_u32 v{OADR}, v{A1}, 10, v{A0}
v_lshlrev_b32 v{A0}, 1, v{Cc}
v_and_b32 v{A1}, 15, v{R}
v_xor_b32 v{A0}, v{A0}, v{A1}
v_lshlrev_b32 v{A0}, 4, v{A0}
v_lshl_add_u32 v{A0}, v{R}, 8, v{A0}
v_add_u32 v{A0}, {FP[0]}, v{A0}
v_xor_b32 v{A1}, 16, v{A0}
s_waitcnt vmcnt(0) lgkmcnt(0)
v_sub_f32 v{vg}, 1.0, v{vg}""")
    for q in range(4):
        a(f"v_lshlrev_b32 v{T+2*q}, 16, v{BV+q}\nv_and_b32 v{T+2*q+1}, 0xffff0000, v{BV+q}")
    for r in range(8): a(f"v_mul_f32 v{T+r}, v{T+r}, v{vg}")
    a("s_barrier")
    stamp(9)
    for p in range(4):
        x0, x1, o = A0, A1, 16384*p
        a(f"ds_read_b128 {vr(64+8*p,4)}, v{x0} offset:{o}\nds_read_b128 {vr(68+8*p,4)}, v{x1} offset:{o}")
    for p in range(4):
        a(f"s_waitcnt lgkmcnt({6-2*p})")
        for r in range(8): a(f"v_add_f32 v{T+r}, v{T+r}, v{64+8*p+r}")
    pack(T, T, 4)
    a(f"buffer_store_dwordx4 {vr(T,4)}, v{OADR}, {srd(OUT)}, 0 offen")
    stamp(10)
    a("s_branch L_end")
    fallback()

def fallback():
    M, NC = SY, 96
    a.label("L_fb")
    a(f"""s_waitcnt vmcnt(0) lgkmcnt(0)
s_lshl_b32 s{sA}, s{sTT}, 11
v_subrev_u32 v{vK}, s{sA}, v{vK}
v_subrev_u32 v{vV}, s{sA}, v{vV}
v_mov_b32 v{M}, 0xff800000
s_mov_b32 s{sD}, 0""")
    a.label("L_fb1")
    a(f"buffer_load_dwordx4 {vr(KV[0],4)}, v{vK}, {srd(WS)}, s{sD} offen sc1\ns_waitcnt vmcnt(0)")
    qk(NC, 0, 0)
    a("s_nop 7\ns_nop 3")
    for j in range(8): a(f"v_max3_f32 v{M}, v{NC+2*j}, v{NC+2*j+1}, v{M}")
    a(f"s_add_u32 s{sD}, s{sD}, 2048\ns_cmp_lg_u32 s{sD}, 131072\ns_cbranch_scc1 L_fb1")
    a(f"""v_mov_b32 v{M+1}, v{M}
s_nop 1
v_permlane32_swap_b32 v{M}, v{M+1}
s_nop 1
v_max_f32 v{M}, v{M}, v{M+1}""")
    for j in range(16): a(f"v_sub_f32 v{112+j}, 0, v{M}\nv_mov_b32 v{OA+j}, 0")
    a(f"s_mov_b32 s{sD}, 0")
    a.label("L_fb2")
    a(f"""buffer_load_dwordx4 {vr(KV[0],4)}, v{vK}, {srd(WS)}, s{sD} offen sc1
s_mov_b64 exec, {sr(sVM,2)}
buffer_load_dwordx4 {vr(KV[0]+4,4)}, v{vV}, {srd(WS)}, s{sD} offen offset:1024 sc1
buffer_load_dwordx4 {vr(KV[0]+8,4)}, v{vV}, {srd(WS)}, s{sD} offen offset:1536 sc1
s_mov_b64 exec, -1
s_waitcnt vmcnt(0)""")
    qk(NC, 0, 0, vr(112,16))
    a("s_nop 7\ns_nop 3")
    for j in range(16): ex(NC+j)
    a("s_nop 1")
    pv(0, 0, 0, NC); pv(0, 0, 1, NC)
    a(f"s_add_u32 s{sD}, s{sD}, 2048\ns_cmp_lg_u32 s{sD}, 131072\ns_cbranch_scc1 L_fb2")
    a("s_nop 7\ns_nop 3\ns_branch L_fbdone")

def role_q_head():
    w_addr()
    a(f"""s_lshl_b32 s{sLD}, s{sTT}, 10
s_lshl_b32 s{sD}, s{sW}, 10
s_mov_b32 s{sC}, 2""")
    a(f"""v_lshlrev_b32 v1, 2, v{vL}
v_add_u32 v2, {FLG}, v1
v_mov_b32 v3, 0
s_lshl_b32 s{sA}, s{sST}, 7
v_lshl_add_u32 v4, v{vL}, 4, s{sA}
v_and_b32 v4, 1023, v4
s_mul_i32 s{sA}, s{sHP}, 192
v_add_u32 v5, s{sA}, v1
v_lshlrev_b32 v6, 8, v{vL}
s_waitcnt lgkmcnt(0)""")
    stamp2(1)
    a(f"""s_cmp_lg_u32 s{sW}, 11
s_cbranch_scc1 L_q1
s_cmp_lg_u32 s2, 0
s_cbranch_scc1 L_q0
s_mov_b64 exec, 0xffffffffffff
buffer_store_dword v3, v6, {srd(WS)}, 0 offen sc1
s_mov_b64 exec, -1""".replace("s_mov_b64 exec, 0xffffffffffff", "s_mov_b32 exec_hi, 0"))
    a.label("L_q0")
    a(f"""ds_write_b32 v2, v3
s_mov_b32 m0, {GWL}
s_nop 0
buffer_load_dwordx4 v4, {srd(GW)}, 0 offen lds
s_mov_b32 m0, {B1L}
s_nop 0
buffer_load_dword v5, {srd(B1)}, 0 offen lds""")
    a.label("L_q1")
    for i in range(NS-1):
        if i and OPT['ib'] >= i: a('s_barrier')
        load_wq(i)
    if OPT['qp']: a('s_branch L_roleQ')
def role_q():
    a.label("L_roleQ")
    if not OPT['qp']: role_q_head()
    deferred()
    w1_addr(vG2)
    stamp2(2)
    a(f"s_mov_b32 s{sA}, {16384+8192}")
    wa64(1, 2, sA)
    if OPT['gdot']:
        a(f"v_lshrrev_b32 v{vT0}, 5, v{vL}\nv_lshlrev_b32 v{vT0}, 4, v{vT0}\nv_add_u32 v{vT0}, {GWL}, v{vT0}\nv_mov_b32 v{vT1}, 0\nv_mov_b32 v{vG1}, 0")
    vm = VM(); bx = Base(vXA); bw = Base(vWA, 16384)
    for i in range(NS-1): vm.add(('s', i))
    deferred_wait()
    for i in range(8):
        vm.wait(('s', i))
        if i == 0:
            a(f"""s_cmp_lg_u32 s{sW}, 11
s_cbranch_scc1 L_q2
s_cmp_lg_u32 s2, 0
s_cbranch_scc1 L_q2
v_mov_b32 v4, 1
s_mov_b64 exec, 1
buffer_store_dword v4, v3, {srd(DBG)}, 0 offen sc1
s_mov_b64 exec, -1""")
            a.label("L_q2")
        if i == 0: stamp2(3)
        a("s_barrier")
        if i in (0,1,2,4,7): stamp2({0:4,1:6,2:7,4:8,7:9}[i])
        if i == 0: stamp(1)
        ld = step_loads(i, vm, load_wq, 1, vG2)
        if i == OPT['clr']:
            assert not OPT['gdot'] and i < 6
            ld.append(f"""s_lshl_b32 s{sA}, s{sRB}, 2
s_add_u32 s{sA}, s{sA}, s{sTT}
s_lshl_b32 s{sA}, s{sA}, 4
s_add_u32 s{sA}, s{sA}, s{sHP}
s_lshl_b32 s{sA}, s{sA}, 11
s_add_u32 s{sA}, s{sA}, {OB}
v_lshlrev_b32 v116, 4, v{vL}
v_mov_b64 v[112:113], -1
v_mov_b64 v[114:115], -1
buffer_store_dwordx4 v[112:115], v116, {srd(WS)}, s{sA} offen sc1
buffer_store_dwordx4 v[112:115], v116, {srd(WS)}, s{sA} offen offset:1024 sc1""")
            vm.add('clr', 2)
        qkv_step(i, 'Q', bx, bw, ld)
        if i in (0,7): stamp2(5 if i == 0 else 10)
    stamp(2); stamp3(1)
    if OPT['qb']:
        assert OPT['sg0'] or OPT['sig'] > 0
        vm.wait(('w', 0)); a("s_barrier")
    if OPT['gdot']: a(f"s_nop 2\nv_add_f32 v{vG1}, v{vG1}, v{vT1}")
    b1_init(sC)
    if OPT['gdot']:
        a(f"v_mov_b32 v{vG0}, v{vG1}\ns_nop 1\nv_permlane32_swap_b32 v{vG0}, v{vG1}\ns_nop 1\nv_add_f32 v{vG1}, v{vG0}, v{vG1}")
        sigmoid(vG1)
    a(f"""s_lshl_b32 s{sA}, s{sTT}, 10
s_add_u32 s{sA}, s{sA}, {QST}
v_lshl_add_u32 v{vXA}, v{vL}, 4, s{sA}
s_mov_b32 s{sA}, {QSC}
s_nop 1""")
    for j in range(16): a(f"v_mul_f32 v{ACC+j}, s{sA}, v{ACC+j}")
    pack(WF, ACC, 8)
    a(f"ds_write_b128 v{vXA}, {vr(WF,4)}\nds_write_b128 v{vXA}, {vr(WF+4,4)} offset:4096")
    a(f"s_movk_i32 s{sA}, 128")
    wa64(vT0, vT1, sA, 192)
    bw = Base(vWA)
    b1_fin()
    for d in range(4):
        ffn1_pair(d, bw, d_phase(d, vm, vG2, False, None))
    gemm()

GA = 0
HF = [64, 72, 80, 88]
WR = 96
vH, vWa, vWb, vR0, vR1 = 160, 161, 162, 163, 164
def sigmoid(r):
    a(f"""v_mul_f32 v{r}, 0xbfb8aa3b, v{r}
v_exp_f32 v{r}, v{r}
v_and_b32 v{vT0}, 31, v{vL}
v_add_f32 v{r}, 1.0, v{r}
v_rcp_f32 v{r}, v{r}
s_lshl_b32 s{sA}, s{sTT}, 7
s_add_u32 s{sA}, s{sA}, {GL}
v_lshl_add_u32 v{vT0}, v{vT0}, 2, s{sA}
ds_write_b32 v{vT0}, v{r}""")
def gate():
    a(f"v_lshrrev_b32 v{vT0}, 5, v{vL}\nv_lshlrev_b32 v{vT0}, 4, v{vT0}\nv_add_u32 v{vT0}, {GWL}, v{vT0}")
    G4 = [152, 156, 144, 148]
    for k in range(4): a(f"ds_read_b128 {vr(G4[k],4)}, v{vT0} offset:{32*k}")
    for k in range(32):
        a(f"s_waitcnt lgkmcnt({min(3,31-k)})")
        a(f"v_mfma_f32_32x32x16_bf16 {vr(ACC,16)}, {vr(G4[k%4],4)}, {vr(4*k,4)}, {'0' if k==0 else vr(ACC,16)}")
        if k < 28: a(f"ds_read_b128 {vr(G4[k%4],4)}, v{vT0} offset:{32*(k+4)}")
def s1_pre():
    a(f"""s_cmp_lg_u32 s{sW}, 8
s_cbranch_scc1 L_e0
s_lshr_b32 s{sD}, s{sHP}, 1
s_lshl_b32 s{sD}, s{sD}, 8
v_mov_b32 v{vR1}, 0
s_mov_b64 exec, 1
buffer_load_dword v{vR0}, v{vR1}, {srd(WS)}, s{sD} offen sc1
s_mov_b64 exec, -1""")
    a.label("L_e0")
def s1_wait():
    a(f"s_cmp_lg_u32 s{sW}, 8\ns_cbranch_scc1 L_e")
    stamp3(10)
    a(f"s_mov_b64 exec, 1\ns_waitcnt vmcnt(0)\nv_cmp_eq_u32 vcc, 32, v{vR0}\ns_mov_b64 exec, -1\ns_cbranch_vccnz L_e")
    poll(sD, vT0, vT1, 32)
    a.label("L_e")
    stamp(3)
    a("s_barrier")
    a(f"s_setprio {OPT['prio']}")
def gemm():
    s1_pre()
    a(f"""v_lshrrev_b32 v{vT0}, 3, v{vL}
v_lshlrev_b32 v{vT0}, 10, v{vT0}
v_bfe_u32 v{vT1}, v{vL}, 4, 1
v_lshlrev_b32 v{vT1}, 2, v{vT1}
v_and_b32 v{vWa}, 7, v{vL}
v_xor_b32 v{vWa}, v{vWa}, v{vT1}
v_lshl_add_u32 v{vWa}, v{vWa}, 4, v{vT0}
s_lshr_b32 s{sA}, s{sHP}, 1
s_lshl_b32 s{sA}, s{sA}, 7
v_add_u32 v{vWa}, s{sA}, v{vWa}
v_add_u32 v{vWb}, 8192, v{vWa}
s_nop 0""")
    ffn1_epi(WF)
    s1_wait()
    h_store(WF, sC, vT0)
    if not OPT['gdot'] and OPT['gpre'] != 2: gate()
    if not OPT['gdot'] and OPT['gpre'] != 2:
        a("s_nop 7\ns_nop 3"); sigmoid(ACC)
    a(f"""s_lshl_b32 s{sA}, s{sW}, 2
s_add_u32 s{sA}, s{sA}, {FLG}
v_mov_b32 v{vT0}, s{sA}
v_mov_b32 v{vT1}, 1
s_waitcnt vmcnt(0)
ds_write_b32 v{vT0}, v{vT1}""")
    a(f"""v_lshrrev_b32 v{vT0}, 5, v{vL}
v_bfe_u32 v{vT1}, v{vL}, 2, 2
v_lshl_add_u32 v{vT0}, v{vT0}, 2, v{vT1}
v_lshlrev_b32 v{vT0}, 7, v{vT0}
v_bfe_u32 v{vT1}, v{vL}, 4, 1
v_lshl_add_u32 v{vT0}, v{vT1}, 5, v{vT0}
v_and_b32 v{vT1}, 3, v{vL}
v_lshl_add_u32 v{vT0}, v{vT1}, 3, v{vT0}
v_bfe_u32 v{vT1}, v{vL}, 3, 1
v_lshl_add_u32 v{vT0}, v{vT1}, 6, v{vT0}
s_lshl_b32 s{sLD}, s{sTT}, 13
s_add_u32 s{sLD}, s{sLD}, {RING}
v_add_u32 v{vR0}, s{sLD}, v{vT0}
v_xor_b32 v{vR1}, 64, v{vR0}""")
    if OPT['gdot'] or OPT['gpre'] != 2:
        for j in range(0, 64, 2): a(f"v_mov_b64 {vr(GA+j,2)}, 0")
    a(f"""s_mul_i32 s{sD}, s{sTT}, 22
s_cmp_eq_u32 s{sTT}, 3
s_subb_u32 s{sD}, s{sD}, 0
s_lshr_b32 s{sA}, s{sTT}, 1
s_sub_u32 s{sCNT}, 22, s{sA}
s_add_u32 s{sE}, s{sD}, s{sCNT}
s_sub_u32 s{sE}, s{sE}, 1
s_lshl_b32 s{sA}, s{sRB}, 2
s_and_b32 s{sB}, s{sHP}, 1
s_lshl_b32 s{sB}, s{sB}, 1
s_add_u32 s{sF}, s{sA}, s{sB}
s_mul_i32 s{sA}, s{sF}, {86*1024}
s_add_u32 s{sA}, s{sA}, {HB}
v_lshl_add_u32 v{vH}, v{vL}, 4, s{sA}""")
    a(f"s_lshl_b32 s{sC}, s{sRB}, 8\ns_add_u32 s{sC}, s{sC}, 4096")
    a(f"s_cmp_lg_u32 s{sW}, 8\ns_cbranch_scc1 L_s2done")
    a(f"v_lshlrev_b32 v{vT0}, 2, v{vL}\nv_add_u32 v{vT0}, {FLG}, v{vT0}\ns_mov_b64 exec, 0xfff")
    a.label("L_flg")
    a(f"""ds_read_b32 v{vT1}, v{vT0}
s_waitcnt lgkmcnt(0)
v_cmp_ne_u32 vcc, 1, v{vT1}
s_nop 0
s_cbranch_vccz L_flgok""")
    spin("L_flg", "L_flgok", 4)
    a.label("L_flgok")
    a("s_mov_b64 exec, -1")
    signal(sC, vT0, vT1)
    a.label("L_s2done")
    a(f"s_setprio {OPT['prio2']}")
    a(f"s_lshl_b32 s{sA}, s{sTT}, 17\ns_lshl_b32 s{sB}, s{sTT}, 14\ns_add_u32 s{sB}, s{sB}, {WOL}")
    for n in range(8):
        a(f"""s_add_u32 m0, s{sB}, {2048*n}
s_nop 0
buffer_load_dwordx4 v{vWa}, {srd(WO)}, s{sA} offen lds
s_add_u32 m0, s{sB}, {2048*n+1024}
s_nop 0
buffer_load_dwordx4 v{vWb}, {srd(WO)}, s{sA} offen lds
s_add_u32 s{sA}, s{sA}, 16384""")
    if not OPT['gdot'] and OPT['gpre'] == 2:
        gate()
        for j in range(64): a(f"v_mov_b32 v{GA+j}, 0")
        sigmoid(ACC)
    stamp(4)
    poll(sC, vT0, vT1)
    stamp(5)
    def issue(st):
        a(f"""s_lshl_b32 s{sA}, s{sD}, 14
s_add_u32 m0, s{sLD}, {2048*st}
s_lshl_b32 s{sB}, s{sD}, 10
buffer_load_dwordx4 v{vWa}, {srd(W2)}, s{sA} offen lds
s_add_u32 m0, s{sLD}, {2048*st+1024}
buffer_load_dwordx4 {vr(HF[st],4)}, v{vH}, {srd(WS)}, s{sB} offen sc1
buffer_load_dwordx4 v{vWb}, {srd(W2)}, s{sA} offen lds
s_add_u32 s{sB}, s{sB}, {86*1024}
s_add_u32 s{sD}, s{sD}, 1
buffer_load_dwordx4 {vr(HF[st]+4,4)}, v{vH}, {srd(WS)}, s{sB} offen sc1
s_min_u32 s{sD}, s{sD}, s{sE}""")
    def wread(r, o):
        a(f"""ds_read_b64_tr_b16 {vr(r,2)}, v{vR0} offset:{o}
ds_read_b64_tr_b16 {vr(r+2,2)}, v{vR0} offset:{o+1024}
ds_read_b64_tr_b16 {vr(r+4,2)}, v{vR1} offset:{o}
ds_read_b64_tr_b16 {vr(r+6,2)}, v{vR1} offset:{o+1024}""")
    def mm(tt, ct, w, h):
        g = vr(GA+32*tt+16*ct, 16)
        a(f"v_mfma_f32_32x32x16_bf16 {g}, {vr(w+4*ct,4)}, {vr(h+4*tt,4)}, {g}")
    if OPT['nof2']: a("s_branch L_f2done")
    for st in range(4): issue(st)
    a.label("L_f2")
    for st in range(4):
        a("s_waitcnt vmcnt(12)")
        if OPT['f2s']:
            o = 2048*st
            a(f"ds_read_b64_tr_b16 {vr(WR,2)}, v{vR0} offset:{o}\nds_read_b64_tr_b16 {vr(WR+2,2)}, v{vR0} offset:{o+1024}\ns_waitcnt lgkmcnt(0)")
            mm(0, 0, WR, HF[st])
            a(f"ds_read_b64_tr_b16 {vr(WR+4,2)}, v{vR1} offset:{o}\ns_waitcnt lgkmcnt(0)")
            mm(1, 0, WR, HF[st])
            a(f"ds_read_b64_tr_b16 {vr(WR+6,2)}, v{vR1} offset:{o+1024}\ns_waitcnt lgkmcnt(0)")
            mm(0, 1, WR, HF[st])
            a(f"s_sub_u32 s{sCNT}, s{sCNT}, 1\ns_cmp_eq_u32 s{sCNT}, 0\ns_cbranch_scc1 L_f2x{st}")
            g = capture(issue, st)
            a(g[0]); a(g[1]); a(g[2])
            mm(1, 1, WR, HF[st])
            for x in g[3:]: a(x)
            continue
        wread(WR, 2048*st)
        a("s_waitcnt lgkmcnt(2)")
        mm(0, 0, WR, HF[st]); mm(1, 0, WR, HF[st])
        a("s_waitcnt lgkmcnt(0)")
        mm(0, 1, WR, HF[st]); mm(1, 1, WR, HF[st])
        a(f"s_sub_u32 s{sCNT}, s{sCNT}, 1\ns_cmp_eq_u32 s{sCNT}, 0\ns_cbranch_scc1 L_f2done")
        issue(st)
    a("s_branch L_f2")
    if OPT['f2s']:
        for st in range(4):
            a.label(f"L_f2x{st}")
            mm(1, 1, WR, HF[st])
            if st < 3: a("s_branch L_f2done")
    a.label("L_f2done")
    stamp(6)
    a(f"""s_lshl_b32 s{sA}, s{sTT}, 14
s_add_u32 s{sA}, s{sA}, {WOL}
s_sub_u32 s{sA}, s{sA}, s{sLD}
v_add_u32 v{vR0}, s{sA}, v{vR0}
v_add_u32 v{vR1}, s{sA}, v{vR1}
s_lshl_b32 s{sA}, s{sF}, 15
s_lshl_b32 s{sB}, s{sTT}, 13
s_add_u32 s{sA}, s{sA}, s{sB}
s_add_u32 s{sA}, s{sA}, {OB}
s_waitcnt vmcnt(0)
v_lshl_add_u32 v{vH}, v{vL}, 4, s{sA}
v_and_b32 v65, 7, v{vL}
v_lshl_add_u32 v65, v65, 10, s{sA}
v_bfe_u32 v{vT0}, v{vL}, 3, 1
v_lshl_add_u32 v65, v{vT0}, 15, v65
v_and_b32 v{vT0}, 31, v{vL}
s_and_b32 s{sB}, s{sHP}, 1
s_lshl_b32 s{sB}, s{sB}, 8
s_add_u32 s{sB}, s{sB}, {GL}
v_lshl_add_u32 v{vWb}, v{vT0}, 2, s{sB}
v_lshrrev_b32 v{vT1}, 5, v{vL}
v_and_b32 v{vWa}, 15, v{vL}
v_xor_b32 v{vWa}, v{vWa}, v{vT1}
v_lshlrev_b32 v{vWa}, 4, v{vWa}
v_lshl_add_u32 v{vWa}, v{vT0}, 8, v{vWa}
s_lshl_b32 s{sA}, s{sTT}, 14
s_add_u32 s{sA}, s{sA}, {FP[0]}
v_add_u32 v{vWa}, s{sA}, v{vWa}
s_waitcnt vmcnt(0)""")
    W8 = 128
    for k in range(4): wread(W8+8*k, 2048*k)
    a(f"""s_mov_b32 s{sB}, 4096
s_mov_b32 s{sC}, 32768
s_mov_b32 s{sD}, {32768+4096}
s_mov_b32 s{sE}, 0
s_barrier""")
    stamp(7)
    OF = 64
    def oload(k):
        a(f"buffer_load_dwordx4 {vr(OF+8*k,4)}, v{vH}, {srd(WS)}, {'0' if k < 4 else 's%d'%sB} offen offset:{1024*(k%4)} sc1")
        a(f"buffer_load_dwordx4 {vr(OF+8*k+4,4)}, v{vH}, {srd(WS)}, s{sC if k < 4 else sD} offen offset:{1024*(k%4)} sc1")
    def ocheck(k):
        r = OF+8*k
        a(f"""v_max3_u32 v{vT0}, v{r}, v{r+1}, v{r+2}
v_max3_u32 v{vT1}, v{r+3}, v{r+4}, v{r+5}
v_max3_u32 v{vT0}, v{r+6}, v{r+7}, v{vT0}
v_max_u32 v{vT0}, v{vT0}, v{vT1}
v_cmp_eq_u32 vcc, -1, v{vT0}""")
    def omm(k):
        w = W8+8*(k % 4)
        mm(0, 0, w, OF+8*k); mm(1, 0, w, OF+8*k); mm(0, 1, w, OF+8*k); mm(1, 1, w, OF+8*k)
    if OPT['prio3'] >= 0: a(f"s_setprio {OPT['prio3']}")
    a(f"""s_mov_b64 exec, 0xffff
buffer_load_dword v{OF}, v{OF+1}, {srd(WS)}, 0 offen sc1
s_mov_b64 exec, -1
ds_read_b32 v{vT0}, v{vWb}
ds_read_b32 v{vWb}, v{vWb} offset:128
s_waitcnt lgkmcnt(0)
v_sub_f32 v{vT0}, 1.0, v{vT0}
v_sub_f32 v{vWb}, 1.0, v{vWb}""")
    for j in range(0, 64, 2):
        g = vT0 if j < 32 else vWb
        a(f"v_pk_mul_f32 {vr(GA+j,2)}, {vr(GA+j,2)}, {vr(g,2)} op_sel_hi:[1,0]")
    a("s_mov_b64 exec, 0xffff")
    a.label("L_opoll")
    a(f"s_waitcnt vmcnt(0)\nv_cmp_eq_u32 vcc, -1, v{OF}\ns_nop 0\ns_cbranch_vccz L_ordy")
    if OPT['bound']: a("s_add_u32 s63, s63, 1\ns_cmp_gt_u32 s63, 100000\ns_cbranch_scc1 L_ordy")
    if OPT['slp']: a(f"s_sleep {OPT['slp']}")
    a(f"buffer_load_dword v{OF}, v{OF+1}, {srd(WS)}, 0 offen sc1\ns_branch L_opoll")
    a.label("L_ordy")
    a("s_mov_b64 exec, -1")
    stamp(8)
    for k in range(8): oload(k)
    for k in range(8):
        a(f"s_waitcnt vmcnt({14-2*k})" + (f" lgkmcnt({min(12,4*(7-k))})" if k >= 4 else ""))
        ocheck(k)
        a(f"s_bitset1_b32 s{sE}, {k}\ns_cbranch_vccnz L_op{k}\ns_bitset0_b32 s{sE}, {k}")
        omm(k)
        a.label(f"L_op{k}")
        if k < 4: wread(W8+8*k, 2048*(k+4))
    a.label("L_orep")
    a(f"s_cmp_eq_u32 s{sE}, 0\ns_cbranch_scc1 L_odone")
    if OPT['bound']: a("s_add_u32 s63, s63, 1\ns_cmp_gt_u32 s63, 100000\ns_cbranch_scc1 L_odone")
    if OPT['slp']: a(f"s_sleep {OPT['slp']}")
    for k in range(8):
        a(f"s_bitcmp1_b32 s{sE}, {k}\ns_cbranch_scc0 L_oi{k}")
        oload(k)
        a.label(f"L_oi{k}")
    a("s_waitcnt vmcnt(0)")
    for k in range(8):
        a(f"s_bitcmp1_b32 s{sE}, {k}\ns_cbranch_scc0 L_oq{k}")
        wread(W8+8*(k % 4), 2048*k)
        ocheck(k)
        a(f"s_nop 0\ns_cbranch_vccnz L_oq{k}\ns_bitset0_b32 s{sE}, {k}\ns_waitcnt lgkmcnt(0)")
        omm(k)
        a.label(f"L_oq{k}")
    a("s_branch L_orep")
    a.label("L_odone")
    stamp(9)
    for ct in range(2):
        for q in range(4):
            a(f"v_xor_b32 v{64+4*ct+q}, {(8*ct+2*q)*16}, v{vWa}")
    a("s_nop 1")
    for ct in range(2):
        for tt in range(2):
            for q in range(4):
                a(f"ds_write_b128 v{64+4*ct+q}, {vr(GA+32*tt+16*ct+4*q,4)} offset:{8192*tt}")
    a("s_waitcnt lgkmcnt(0)\ns_barrier")
    stamp(10)

def epilogue():
    a.label("L_end")
    if OPT['prof']:
        a(f"s_memtime {sr(sPR+22,2)}\ns_memrealtime {sr(sPR+26,2)}\ns_waitcnt lgkmcnt(0)")
        for i in range(14): a(f"v_writelane_b32 v1, s{sPR+2*i}, {i}")
        a(f"""s_mul_i32 s{sA}, s2, 12
s_add_u32 s{sA}, s{sA}, s{sW}
s_lshl_b32 s{sA}, s{sA}, 6
s_add_u32 s{sA}, s{sA}, {PRB}
v_lshlrev_b32 v2, 2, v{vL}
s_mov_b64 exec, 0x3fff
buffer_store_dword v1, v2, {srd(WS)}, s{sA} offen""")
    a.label("L_exit")
    a("s_endpgm")

prologue(); role_kv(); role_q(); epilogue()
probs = check(a.lines)
for p in probs: print(p, file=sys.stderr)
hdr = f"""; fused gate / QKV / attention / FFN / output kernel (generated by gen/gen.py)
; @launch grid=(256,1,1) block=(768,1,1) lds=163840
.amdgcn_target "amdgcn-amd-amdhsa--gfx950"
.text
.globl {NAME}_kernel
.p2align 8
.type {NAME}_kernel,@function
{NAME}_kernel:
"""
ftr = f""".section .rodata,"a"
.p2align 6
.amdhsa_kernel {NAME}_kernel
  .amdhsa_next_free_vgpr 168
  .amdhsa_next_free_sgpr 102
  .amdhsa_accum_offset 168
  .amdhsa_group_segment_fixed_size 0
  .amdhsa_kernarg_size 96
  .amdhsa_user_sgpr_count 2
  .amdhsa_user_sgpr_kernarg_segment_ptr 1
  .amdhsa_system_sgpr_workgroup_id_x 1
.end_amdhsa_kernel
"""
open(sys.argv[1], "w").write(hdr + a.text() + ftr)
```

```python
import sys, os
sys.path.insert(0, os.path.dirname(os.path.abspath(__file__)))
from asmlib import Asm, vr, sr, check
NAME = "gated_mix__softmax_full_mha__dense_activation_squared_relu__prompt"
OPT = dict(prof=0, prio=3, forcefb=0, bound=0, map=0, aprio=8, rot=11, late=1, pipe=1, nof2=0, f2s=1, ns=3, sig=1, gpre=0, prio2=1, w1s=0, hl=0, gdot=0, w1p=6788, kvi=1, m23=1, sg0=1, qb=1, fill=1, pf=0, ib=1, qp=1, slp=1, prio3=0, clr=2, cpf=9, cps=10, xpf=1, inc=0, npl=1, ost=0)
for a_ in sys.argv[2:]:
    k, v = a_.split("="); OPT[k] = int(v)

X, WQKV, W1, W2, WO, B1, B2, GW, OUT, DBG, WS = 4, 8, 12, 16, 20, 24, 28, 32, 36, 40, 44
sW, sHP, sRB, sST, sTT = 48, 49, 50, 51, 52
sA, sB, sC, sD, sE, sF = 53, 54, 55, 56, 57, 58
sLD = 59
sVM = 60
sCNT = 62
sPR = 64
KVB, HB, OB, PRB = 1 << 20, 8 << 20, 16 << 20, 32 << 20
NS = OPT['ns']; SL = 28672
def XS(i): return SL*(i % NS)
def WSL(i): return SL*(i % NS) + 16384
W1P = {5: [(4, 3*SL), (5, 4*SL), (6, 0), (7, SL)], 4: [(5, 4*SL), (5, 0), (6, SL), (7, 2*SL)],
       3: [(6, 3*SL), (6, 4*SL), (6, 2*SL), (7, 0)]}[NS]
W1P = [(max(st, int(str(OPT['w1p'])[d])), b) for d, (st, b) in enumerate(W1P)]
assert OPT['sg0'] or max(st for st, b in W1P) - 8 < OPT['sig']
WOL = 55296
RING = 120832
QST = 153600
GWL = 161792
B1L = 162816
GL = 163072
FLG = 163584
FP = [WOL+16384*p for p in range(4)]
ACC, WF, vXA, vWA, vG0, vG1, vG2, vL, vT0, vT1 = 128, 144, 160, 161, 162, 163, 164, 165, 166, 167
QSC = 0x3eb8aa3b

a = Asm()
NL = chr(10)
nstamp = [0]
def stamp2(i):
    if OPT['prof'] == 2: a(f"s_memtime {sr(sPR+2*i,2)}")
def stamp3(i):
    if OPT['prof'] == 3: a(f"s_memtime {sr(sPR+2*i,2)}")
def stamp(i):
    if OPT['prof'] == 1 or (OPT['prof'] and i == 0):
        a(f"s_memtime {sr(sPR+2*i,2)}")
def srd(s): return sr(s, 4)
def spin(L, D, slp):
    if OPT['bound']:
        a(f"s_add_u32 s63, s63, 1\ns_cmp_gt_u32 s63, 100000\ns_cbranch_scc1 {D}")
    a(f"s_sleep {slp}\ns_branch {L}")

def rot8(p):
    t = f"s_add_u32 s{sA}, s{sRB}, s{sHP}{NL}s_and_b32 s{sA}, s{sA}, 3{NL}s_lshl_b32 s{sST}, s{sA}, 1"
    if p == 3: return f"s_add_u32 s{sA}, s{sRB}, s{sHP}{NL}s_and_b32 s{sA}, s{sA}, 1{NL}s_lshl_b32 s{sA}, s{sA}, 2{NL}s_and_b32 s{sB}, s2, 3{NL}s_add_u32 s{sST}, s{sA}, s{sB}"
    if p: t += f"{NL}s_bfe_u32 s{sA}, s2, {0x10002 if p == 1 else 0x10000}{NL}s_add_u32 s{sST}, s{sST}, s{sA}"
    return t
KOFF = {X:0,WQKV:8,GW:64,B1:40,WS:88,W1:32,DBG:80,WO:16,W2:48,B2:56,OUT:72}
KSZ = {X:2097152,WQKV:1572864,W1:1409024,W2:1409024,WO:524288,B1:2752,B2:1024,GW:1024,OUT:2097152,DBG:256,WS:268435456}
def kload(ss):
    for s in ss: a(f"s_load_dwordx2 {sr(s,2)}, s[0:1], {KOFF[s]}")
def kconst(ss):
    for s in ss: a(f"s_mov_b32 s{s+2}, {KSZ[s]}\ns_mov_b32 s{s+3}, " + ("0x20000" if s == X or OPT['cpf'] != 9 else f"s{X+3}"))
def deferred():
    if OPT['cpf'] == 9: kload((DBG,W1,WO,W2,B2,OUT)); kconst((DBG,W1,WO,W2,B2,OUT))
def deferred_wait():
    if OPT['cpf'] == 9: a("s_waitcnt lgkmcnt(0)")
def prologue():
    if OPT['cpf'] == 9:
        a("s_lshr_b32 s3, s2, 8\ns_cbranch_scc1 L_exit")
        kload((X,GW))
        a("s_getpc_b64 s[96:97]")
        a.label("L_pc0")
        a(f"""v_cmp_gt_u32 vcc, 64, v0
s_lshl_b32 s98, s2, 4
s_cbranch_vccz L_nopf
v_lshl_add_u32 v145, v0, {OPT['cps']}, s98
v_min_u32 v145, L_end-L_pc0, v145
global_load_dword v144, v145, s[96:97]""")
        if OPT['xpf']:
            a(f"""s_and_b32 s98, s2, 3
s_mul_i32 s98, s98, 0x7ff80
s_lshr_b32 s99, s2, 3
s_lshl_b32 s99, s99, 14
v_lshl_add_u32 v147, v0, 8, s98
v_add_u32 v147, s99, v147
s_waitcnt lgkmcnt(0)
global_load_dword v146, v147, {sr(X,2)}""")
        a.label("L_nopf")
        kload((WQKV,B1,WS))
    else:
        a(f"s_cmp_ge_u32 s2, 256\ns_cbranch_scc1 L_exit")
        kload((X,WQKV,GW,B1,WS,W1,DBG,WO,W2,B2,OUT))
    if OPT['cpf'] in (1,2,3,4,5):
        G = OPT['cpf']
        a("s_getpc_b64 s[96:97]")
        a.label("L_pc0")
        a(f"""v_cmp_gt_u32 vcc, 64, v0
s_bfe_u32 s98, s2, {3 | (G << 16)}
s_cbranch_vccz L_nopf
v_lshlrev_b32 v145, {G}, v0
v_add_u32 v145, s98, v145
v_lshlrev_b32 v145, 7, v145
v_min_u32 v145, L_end-L_pc0, v145
global_load_dword v144, v145, s[96:97]""")
        a.label("L_nopf")
    stamp(0)
    if OPT['prof']: a(f"s_memrealtime {sr(sPR+24,2)}")
    a(f"v_lshrrev_b32 v1, 6, v0\nv_and_b32 v{vL}, 63, v0")
    kconst((X,WQKV,GW,B1,WS) if OPT['cpf'] == 9 else (X,WQKV,W1,W2,WO,B1,B2,GW,OUT,DBG,WS))
    a(f"v_readfirstlane_b32 s{sW}, v1")
    a(f"""s_and_b32 s{sA}, s2, 3
s_lshl_b32 s{sA}, s{sA}, 2
s_bfe_u32 s{sB}, s2, 0x20003
s_add_u32 s{sRB}, s{sA}, s{sB}
s_bfe_u32 s{sA}, s2, 0x10002
s_lshr_b32 s{sB}, s2, 5
s_lshl_b32 s{sB if OPT['map'] else sA}, s{sB if OPT['map'] else sA}, {1 if OPT['map'] else 3}
s_add_u32 s{sHP}, s{sA}, s{sB}
{["s_mov_b32 s%d, 0"%sST, "s_and_b32 s%d, s%d, 7"%(sST,sHP), "s_and_b32 s%d, s%d, 6"%(sST,sHP),
"s_lshl_b32 s%d, s%d, 1"%(sA,sRB)+NL+"s_add_u32 s%d, s%d, s%d"%(sA,sA,sHP)+NL+"s_and_b32 s%d, s%d, 7"%(sST,sA),
"s_lshl_b32 s%d, s%d, 1"%(sA,sRB)+NL+"s_and_b32 s%d, s%d, 7"%(sST,sA), "s_and_b32 s%d, s%d, 4"%(sST,sHP), "s_and_b32 s%d, s2, 7"%sST,
"s_lshr_b32 s%d, s2, 3"%sA+NL+"s_and_b32 s%d, s%d, 1"%(sA,sA)+NL+"s_lshl_b32 s%d, s%d, 2"%(sA,sA)+NL+"s_add_u32 s%d, s%d, s2"%(sA,sA)+NL+"s_and_b32 s%d, s%d, 7"%(sST,sA),
rot8(0), rot8(1), rot8(2), rot8(3)][OPT['rot']]}
s_and_b32 s{sTT}, s{sW}, 3
s_mov_b32 s{sVM}, 0xffff
s_mov_b32 s{sVM+1}, 0xffff""")
    if OPT['bound']: a("s_mov_b32 s63, 0")
    a(f"""v_and_b32 v1, 31, v{vL}
v_lshrrev_b32 v2, 5, v{vL}
v_bfe_u32 v3, v{vL}, 1, 3
v_xor_b32 v3, v3, v2
v_lshlrev_b32 v3, 4, v3
v_lshl_add_u32 v3, v1, 7, v3
s_lshl_b32 s{sA}, s{sTT}, 12
v_add_u32 v{vXA}, s{sA}, v3""")
    if OPT['qp']:
        a(f"s_cmp_lt_u32 s{sW}, 8\ns_cbranch_scc1 L_roleKV")
        role_q_head()
        a.label("L_roleKV")
    else: a(f"s_cmp_ge_u32 s{sW}, 8\ns_cbranch_scc1 L_roleQ")
def wa64(t0, t1, base_s, stride=64):
    a(f"""v_lshrrev_b32 v{t0}, 5, v{vL}
v_bfe_u32 v{t1}, v{vL}, 2, 2
v_lshl_add_u32 v{t0}, v{t0}, 3, v{t1}
v_mul_u32_u24 v{t0}, {stride}, v{t0}
v_add_u32 v{t0}, s{base_s}, v{t0}
v_bfe_u32 v{t1}, v{vL}, 4, 1
v_lshl_add_u32 v{t0}, v{t1}, 5, v{t0}
v_and_b32 v{t1}, 3, v{vL}
v_lshl_add_u32 v{vWA}, v{t1}, 3, v{t0}""")

def chunk_off(dst, i, mul):
    a(f"s_add_u32 s{dst}, s{sST}, {i}\ns_and_b32 s{dst}, s{dst}, 7\ns_mul_i32 s{dst}, s{dst}, {mul}")
def capture(f, *args):
    n = len(a.lines); f(*args); out = a.lines[n:]; del a.lines[n:]
    groups = [[]]
    for l in out:
        groups[-1].append(l)
        if l.startswith("buffer_load"): groups.append([])
    return ["\n".join(g) for g in groups if g]
def load_x(i):
    chunk_off(sA, i, 128)
    a(f"s_add_u32 m0, s{sLD}, {XS(i)}\ns_nop 0\nbuffer_load_dwordx4 v{vG0}, {srd(X)}, s{sA} offen lds")
    a(f"s_add_u32 m0, s{sLD}, {XS(i)+1024}\ns_mul_i32 s{sB}, s{sA}, 1536\nbuffer_load_dwordx4 v{vG1}, {srd(X)}, s{sA} offen lds")
    a(f"s_add_u32 m0, s{sD}, {WSL(i)}\ns_nop 0\nbuffer_load_dwordx4 v{vG2}, {srd(WQKV)}, s{sB} offen lds")
def load_wq(i):
    chunk_off(sA, i, 64*3072)
    a(f"s_add_u32 m0, s{sLD}, {WSL(i)+8192}\ns_nop 0\nbuffer_load_dwordx4 v{vG0}, {srd(WQKV)}, s{sA} offen lds")
def load_w1(c, vg):
    chunk_off(sA, c, 64*2752)
    a(f"s_add_u32 m0, s{sD}, {W1P[c//2][1]+12288*(c%2)}\ns_nop 0\nbuffer_load_dwordx4 v{vg}, {srd(W1)}, s{sA} offen lds")
def w1_loads(cs, vg=vG0): return sum((capture(load_w1, c, vg) for c in cs), [])
def step_loads(i, vm, ldf, nper, vg=vG0):
    out = []
    if i + NS - 1 < 8:
        out += capture(ldf, i + NS - 1); vm.add(('s', i + NS - 1), nper)
    if i == W1P[0][0] and vg == vG0: w1_addr(vG0)
    for d in range(4):
        if W1P[d][0] == i:
            out += w1_loads((2*d, 2*d+1), vg); vm.add(('w', d), 2)
    return out
def d_phase(d, vm, vg, kvrole, sigcode, pre=None):
    done = vm.done
    if OPT['sg0']:
        need = d not in done
        if need:
            last = 3 if (d == 2 and OPT['m23']) else d
            vm.wait(('w', last)); done.update(range(d, last+1))
        if pre: pre()
        stamp3(2+2*d)
        if need and not (d == 0 and not kvrole and OPT['qb']): a("s_barrier")
        if d == 0 and kvrole:
            vm.wait('kv'); sigcode()
        stamp3(3+2*d)
        out = []
        for e in range(4):
            if W1P[e][0] == 8 + d:
                out += w1_loads((2*e, 2*e+1), vg); vm.add(('w', e), 2)
        return out
    if d == OPT['sig'] and kvrole:
        vm.wait('kv'); sigcode()
    need = d not in done
    if need:
        ws = [d]
        if d == OPT['sig']: ws = [e for e in range(d, 4) if W1P[e][0] <= 7] or [d]
        if d > OPT['sig'] and d == 2 and W1P[3][0] <= W1P[2][0] and OPT['m23']: ws = [2, 3]
        last = max(ws + [d])
        if not (kvrole and d == OPT['sig'] and W1P[last][0] <= 7):
            if kvrole and d > OPT['sig'] and vm.cnt(('w', last)) == 0:
                L = a.newlabel("w")
                a(f"s_waitcnt vmcnt(1)\ns_cmp_eq_u32 s{sE}, 2\ns_cbranch_scc1 {L}\ns_waitcnt vmcnt(0)"); a.label(L)
            else: vm.wait(('w', last))
        done.update(range(d, last+1))
    if pre: pre()
    stamp3(2+2*d)
    if need and not (d == 0 and not kvrole and OPT['qb']): a("s_barrier")
    stamp3(3+2*d)
    out = []
    for e in range(4):
        if W1P[e][0] == 8 + d:
            out += w1_loads((2*e, 2*e+1), vg); vm.add(('w', e), 2)
    return out
class VM:
    def __init__(s): s.q = []; s.done = set()
    def cnt(s, tag): return len(s.q) - 1 - max(k for k, t in enumerate(s.q) if t == tag)
    def add(s, tag, n=1): s.q += [tag]*n
    def wait(s, tag):
        n = len(s.q) - 1 - max(k for k, t in enumerate(s.q) if t == tag)
        a(f"s_waitcnt vmcnt({n})")
class Base:
    def __init__(s, reg, adj=0): s.reg = reg; s.adj = adj
    def off(s, o, span):
        if o - s.adj < 0 or o - s.adj + span > 65535:
            a(f"v_add_u32 v{s.reg}, {(o - s.adj) & 0xffffffff}, v{s.reg}"); s.adj = o
        return o - s.adj
def w_addr():
    a(f"""v_lshrrev_b32 v{vT0}, 2, v{vL}
s_lshl_b32 s{sA}, s{sTT}, 4
v_add_u32 v{vT0}, s{sA}, v{vT0}
v_and_b32 v{vT1}, 3, v{vL}
s_lshl_b32 s{sA}, s{sHP}, 6
v_mul_u32_u24 v{vT0}, 3072, v{vT0}
v_lshl_add_u32 v{vT1}, v{vT1}, 4, s{sA}
v_add_u32 v{vG0}, v{vT0}, v{vT1}""")
def w1_addr(dst):
    a(f"""s_lshl_b32 s{sA}, s{sW}, 6
v_add_u32 v{vT0}, s{sA}, v{vL}
v_mul_u32_u24 v{vT1}, 43691, v{vT0}
s_mul_i32 s{sA}, s{sHP}, 192
v_lshrrev_b32 v{vT1}, 19, v{vT1}
s_movk_i32 s{sB}, 2752
v_mad_i32_i24 v{vT0}, v{vT1}, -12, v{vT0}
v_lshl_add_u32 v{vT0}, v{vT0}, 4, s{sA}
v_min_u32 v{vT0}, 2736, v{vT0}
v_mad_u32_u24 v{dst}, v{vT1}, s{sB}, v{vT0}""")

def w1_prefetch():
    st = 128 if OPT['pf'] == 1 else 64
    a(f"""s_lshr_b32 s{sA}, s2, 3
s_lshl_b32 s{sA}, s{sA}, 3
s_add_u32 s{sA}, s{sA}, s{sW}
s_mul_i32 s{sA}, s{sA}, 5504
s_lshr_b32 s{sB}, s{sHP}, 3
s_mul_i32 s{sB}, s{sB}, 1216
s_add_u32 s{sA}, s{sA}, s{sB}""")
    for r in range(2):
        offs = list(range(0, 1536, 64)) if st == 64 else ([0] + list(range(64, 1536, 128)) if r else list(range(0, 1536, 128)) + [1532])
        for o in offs:
            a(f"s_buffer_load_dword s{sCNT}, {srd(W1)}, s{sA} offset:{2752*r+o}")
def qkv_step(i, role, bx, bw, ld=()):
    ld = list(ld)
    if not OPT['late']:
        for g in ld: a(g)
        ld = []
    wo = bw.off(WSL(i), 8192); xo = bx.off(XS(i), 0)
    rb_ = 64 if role == 'Q' else 128
    def xr(s):
        a(f"ds_read_b128 {vr(16*i+4*s,4)}, v{vXA} offset:{xo}")
        a(f"v_xor_b32 v{vXA}, {32 if s%2==0 else 96}, v{vXA}")
    def wr(s):
        a(f"ds_read_b64_tr_b16 {vr(WF+4*s,2)}, v{vWA} offset:{wo+16*rb_*s}")
        a(f"ds_read_b64_tr_b16 {vr(WF+4*s+2,2)}, v{vWA} offset:{wo+16*rb_*s+4*rb_}")
    def mf(j, s):
        c = "0" if (j == 0 and s == 0) else vr(ACC,16)
        A, B = (vr(16*j+4*s,4), vr(WF+4*s,4)) if role == 'V' else (vr(WF+4*s,4), vr(16*j+4*s,4))
        a(f"v_mfma_f32_32x32x16_bf16 {vr(ACC,16)}, {A}, {B}, {c}")
    gd = role == 'Q' and OPT['gdot']
    def dots(j, s, g):
        for r in range(4): a(f"v_dot2c_f32_bf16 v{vT1 if r%2 else vG1}, v{16*j+4*s+r}, v{g+r}")
    def gr(j, s, g): a(f"ds_read_b128 {vr(g,4)}, v{vT0} offset:{128*j+32*s}")
    if OPT['pipe']:
        for s in range(4):
            if i > 0: mf(i-1, s)
            if gd and i > 0: dots(i-1, s, 16*i+4*s)
            wr(s); xr(s)
            if gd and i < 7: gr(i, s, 16*i+16+4*s)
            for _ in range((len(ld) + 3 - s)//(4 - s)): a(ld.pop(0))
        if i < 7: a("s_waitcnt lgkmcnt(0)")
        else:
            for s in range(4):
                a(f"s_waitcnt lgkmcnt({9-(2 if gd else 3)*s})")
                mf(7, s)
                if gd: gr(7, s, WF+4*s)
            if gd:
                for s in range(4):
                    a(f"s_waitcnt lgkmcnt({3-s})")
                    dots(7, s, WF+4*s)
        return
    for s in range(4):
        xr(s); wr(s)
    for s in range(4):
        a(f"s_waitcnt lgkmcnt({9-3*s})")
        mf(i, s)
        for _ in range((len(ld) + 3 - s)//(4 - s)): a(ld.pop(0))
def pack(dst, src, n):
    for j in range(n):
        a(f"v_cvt_pk_bf16_f32 v{dst+j}, v{src+2*j}, v{src+2*j+1}")
def b1_init(ct_s):
    a(f"""v_lshrrev_b32 v{vT0}, 5, v{vL}
v_lshlrev_b32 v{vT0}, 3, v{vT0}
s_lshl_b32 s{sA}, s{ct_s}, 6
s_add_u32 s{sA}, s{sA}, {B1L}
v_add_u32 v{vT0}, s{sA}, v{vT0}""")
    for q in range(4):
        a(f"ds_read_b64 {vr(WF+8+2*q,2)}, v{vT0} offset:{16*q}")
def b1_fin():
    a("s_waitcnt lgkmcnt(0)")
    for q in range(8):
        a(f"v_lshlrev_b32 v{ACC+2*q}, 16, v{WF+8+q}\nv_and_b32 v{ACC+2*q+1}, 0xffff0000, v{WF+8+q}")
def ffn1_pair(d, bw, ld=(), fill=None):
    ld = list(ld)
    if not OPT['late']:
        for g in ld: a(g)
        ld = []
    base = bw.off(W1P[d][1], 22400)
    def rd(k):
        c, s = k//4, k % 4
        o = base + 12288*c + 3072*s
        r = WF+4*(k % 4)
        a(f"ds_read_b64_tr_b16 {vr(r,2)}, v{vWA} offset:{o}\nds_read_b64_tr_b16 {vr(r+2,2)}, v{vWA} offset:{o+768}")
    for k in range(4): rd(k)
    for k in range(8):
        a(f"s_waitcnt lgkmcnt({6 if k<5 else 2*(7-k)})")
        a(f"v_mfma_f32_32x32x16_bf16 {vr(ACC,16)}, {vr(WF+4*(k%4),4)}, {vr(32*d+4*k,4)}, {vr(ACC,16)}")
        if k < 4: rd(k+4)
        for _ in range((len(ld) + 7 - k)//(8 - k)): a(ld.pop(0))
        if fill:
            for x in fill[k]: a(x)
def ffn1_epi(tmp):
    for j in range(16): a(f"v_max_f32 v{ACC+j}, 0, v{ACC+j}")
    for j in range(8): a(f"v_pk_mul_f32 {vr(ACC+2*j,2)}, {vr(ACC+2*j,2)}, {vr(ACC+2*j,2)}")
    pack(tmp, ACC, 8)
def h_store(tmp, ct_s, av):
    L = a.newlabel("hs")
    a(f"""s_mul_i32 s{sA}, s{sHP}, 3
s_add_u32 s{sA}, s{sA}, s{ct_s}
s_cmp_ge_u32 s{sA}, 43
s_cbranch_scc1 {L}
s_lshl_b32 s{sA}, s{sA}, 1
s_lshl_b32 s{sB}, s{sRB}, 2
s_add_u32 s{sB}, s{sB}, s{sTT}
s_mul_i32 s{sB}, s{sB}, 86
s_add_u32 s{sA}, s{sA}, s{sB}
s_lshl_b32 s{sA}, s{sA}, 10
s_add_u32 s{sA}, s{sA}, {HB}
v_lshlrev_b32 v{av}, 4, v{vL}
buffer_store_dwordx4 {vr(tmp,4)}, v{av}, {srd(WS)}, s{sA} offen sc1
buffer_store_dwordx4 {vr(tmp+4,4)}, v{av}, {srd(WS)}, s{sA} offen offset:1024 sc1""")
    a.label(L)
def poll(cnt_s, val_v, adr_v, target=16):
    L = a.newlabel("poll"); D = a.newlabel("polld")
    a(f"v_mov_b32 v{adr_v}, 0\ns_mov_b64 exec, 1")
    a.label(L)
    a(f"""buffer_load_dword v{val_v}, v{adr_v}, {srd(WS)}, s{cnt_s} offen sc1
s_waitcnt vmcnt(0)
v_cmp_eq_u32 vcc, {target}, v{val_v}
s_nop 0
s_cbranch_vccnz {D}""")
    spin(L, D, 1)
    a.label(D)
    a("s_mov_b64 exec, -1")
def signal(cnt_s, v0_, v1_):
    a(f"""v_mov_b32 v{v0_}, 0
v_mov_b32 v{v1_}, 1
s_mov_b64 exec, 1
buffer_atomic_add v{v1_}, v{v0_}, {srd(WS)}, s{cnt_s} offen sc1
s_mov_b64 exec, -1""")

def role_kv():
    a(f"""v_lshrrev_b32 v1, 3, v{vL}
s_lshl_b32 s{sA}, s{sRB}, 7
s_lshl_b32 s{sB}, s{sW}, 4
s_add_u32 s{sA}, s{sA}, s{sB}
v_add_u32 v4, s{sA}, v1
v_lshlrev_b32 v4, 10, v4
v_and_b32 v2, 7, v{vL}
v_lshrrev_b32 v3, 4, v{vL}
v_xor_b32 v5, v2, v3
v_lshl_add_u32 v{vG0}, v5, 4, v4
v_xor_b32 v{vG1}, 64, v{vG0}
v_add_u32 v{vG1}, 8192, v{vG1}
s_lshl_b32 s{sLD}, s{sW}, 11
s_lshl_b32 s{sD}, s{sW}, 10
s_lshl_b32 s{sA}, s{sW}, 3
v_add_u32 v1, s{sA}, v1
v_mul_u32_u24 v1, 3072, v1
v_and_b32 v3, 1, v3
v_lshlrev_b32 v3, 2, v3
v_xor_b32 v2, v2, v3
v_lshl_add_u32 v1, v2, 4, v1
s_and_b32 s{sE}, s{sHP}, 1
s_lshl_b32 s{sA}, s{sE}, 10
s_lshr_b32 s{sF}, s{sHP}, 1
s_lshl_b32 s{sB}, s{sF}, 7
s_add_u32 s{sA}, s{sA}, s{sB}
s_add_u32 s{sA}, s{sA}, 1024
v_add_u32 v{vG2}, s{sA}, v1
s_lshr_b32 s{sC}, s{sW}, 2
s_waitcnt lgkmcnt(0)""")
    stamp2(1)
    for i in range(NS-1):
        if i and OPT['ib'] >= i: a('s_barrier')
        load_x(i)
    stamp2(2)
    deferred()
    a(f"""v_lshrrev_b32 v1, 5, v{vL}
v_bfe_u32 v2, v{vL}, 2, 2
v_lshl_add_u32 v1, v1, 3, v2
v_lshlrev_b32 v1, 7, v1
v_bfe_u32 v2, v{vL}, 4, 1
v_lshl_add_u32 v1, v2, 5, v1
v_and_b32 v2, 3, v{vL}
v_lshl_add_u32 v1, v2, 3, v1
v_bfe_u32 v2, v{vL}, 3, 1
v_xor_b32 v2, s{sC}, v2
v_lshl_add_u32 v1, v2, 6, v1
v_add_u32 v{vWA}, 16384, v1""")
    if OPT['pf']: w1_prefetch()
    deferred_wait()
    a(f"s_cmp_lg_u32 s{sE}, 0\ns_cbranch_scc1 L_roleV")
    for role in "KV":
        if role == 'V': a.label("L_roleV")
        vm = VM(); bx = Base(vXA); bw = Base(vWA, 16384)
        for i in range(NS-1): vm.add(('s', i), 3)
        for i in range(8):
            vm.wait(('s', i))
            if i == 0: stamp2(3)
            a("s_barrier")
            if i in (0,1,2,4,7): stamp2({0:4,1:6,2:7,4:8,7:9}[i])
            if i == 0: stamp(1)
            qkv_step(i, role, bx, bw, step_loads(i, vm, load_x, 3))
            if i in (0,7): stamp2(5 if i == 0 else 10)
        vm.add('kv', 3)
        stamp(2); stamp3(1)
        b1_init(sC)
        a(f"v_mov_b32 v{vG1}, 0\ns_mov_b64 exec, 1\nbuffer_load_dword v{vXA}, v{vG1}, {srd(DBG)}, 0 offen sc1\ns_mov_b64 exec, -1")
        a(f"""s_lshl_b32 s{sA}, s{sF}, 1
s_add_u32 s{sA}, s{sA}, s{sC}
s_lshl_b32 s{sA}, s{sA}, 18
s_lshl_b32 s{sB}, s{sRB}, 2
s_add_u32 s{sB}, s{sB}, s{sTT}
s_lshl_b32 s{sB}, s{sB}, 11
s_add_u32 s{sA}, s{sA}, s{sB}
s_add_u32 s{sA}, s{sA}, {KVB}""")
        if role == 'K':
            a(f"""v_and_b32 v{vG2}, 0x33, v{vL}
v_bfe_u32 v{vG1}, v{vL}, 2, 1
v_lshl_add_u32 v{vG2}, v{vG1}, 3, v{vG2}
v_bfe_u32 v{vG1}, v{vL}, 3, 1
v_lshl_add_u32 v{vG2}, v{vG1}, 2, v{vG2}
v_lshlrev_b32 v{vG2}, 4, v{vG2}
s_add_u32 s{sB}, s{sA}, 131072""")
            pack(WF, ACC, 8)
            a(f"buffer_store_dwordx4 {vr(WF,4)}, v{vG2}, {srd(WS)}, s{sA} offen sc1")
            a(f"buffer_store_dwordx4 {vr(WF+4,4)}, v{vG2}, {srd(WS)}, s{sB} offen sc1")
        else:
            a(f"""v_and_b32 v{vG2}, 15, v{vL}
v_lshlrev_b32 v{vG2}, 4, v{vG2}
v_lshrrev_b32 v{vG1}, 5, v{vL}
v_lshl_add_u32 v{vG2}, v{vG1}, 8, v{vG2}
v_bfe_u32 v{vG1}, v{vL}, 4, 1
v_lshl_add_u32 v{vG2}, v{vG1}, 17, v{vG2}
s_nop 0""")
            pack(WF, ACC, 8)
            a(f"buffer_store_dwordx4 {vr(WF,4)}, v{vG2}, {srd(WS)}, s{sA} offen offset:1024 sc1")
            a(f"buffer_store_dwordx4 {vr(WF+4,4)}, v{vG2}, {srd(WS)}, s{sA} offen offset:1536 sc1")
        if role == 'K': a("s_branch L_kvffn")
    a.label("L_kvffn")
    a(f"s_lshl_b32 s{sA}, s{sC}, 6")
    wa64(vT0, vT1, sA, 192)
    bw = Base(vWA)
    b1_fin()
    def sigcode():
        a(f"""v_mov_b32 v{vT0}, {FLG+64}
v_mov_b32 v{vT1}, 1
s_mov_b64 exec, 1
ds_add_rtn_u32 v{vT0}, v{vT0}, v{vT1}
s_waitcnt lgkmcnt(0)
v_cmp_eq_u32 vcc, 7, v{vT0}
s_nop 0
s_cbranch_vccz L_s1done""")
        a.label("L_boot")
        a(f"""v_cmp_eq_u32 vcc, 1, v{vXA}
s_nop 0
s_cbranch_vccnz L_bootok
v_mov_b32 v{vT0}, 0
buffer_load_dword v{vXA}, v{vT0}, {srd(DBG)}, 0 offen sc1
s_waitcnt vmcnt(0)""")
        spin("L_boot", "L_bootok", 1)
        a.label("L_bootok")
        a(f"s_lshl_b32 s{sA}, s{sF}, 8\nv_mov_b32 v{vT0}, 0\nbuffer_atomic_add v{vT1}, v{vT0}, {srd(WS)}, s{sA} offen sc1\ns_mov_b32 s{sE}, 2")
        a.label("L_s1done")
        a("s_mov_b64 exec, -1")
    for d in range(4):
        if OPT['fill']: ffn1_pair(d, bw, d_phase(d, vm, vG0, True, sigcode), att_fill(d))
        else: ffn1_pair(d, bw, d_phase(d, vm, vG0, True, sigcode, att_setup if d == 3 else None))
    attention()

KV = [0, 12, 24, 36]; QF = 48; OA = 64; SX, SY = 128, 144
vK, vV, vI = 160, 162, 163
def kv_load(b):
    a(f"""buffer_load_dwordx4 {vr(KV[b],4)}, v{vK}, {srd(WS)}, s{sD} offen sc1
s_mov_b64 exec, {sr(sVM,2)}
buffer_load_dwordx4 {vr(KV[b]+4,4)}, v{vV}, {srd(WS)}, s{sD} offen offset:1024 sc1
buffer_load_dwordx4 {vr(KV[b]+8,4)}, v{vV}, {srd(WS)}, s{sD} offen offset:1536 sc1
s_mov_b64 exec, -1
s_add_u32 s{sD}, s{sD}, 8192
s_and_b32 s{sD}, s{sD}, 0x1ffff""")
def qk(dst, kb, q, c="0"):
    a(f"v_mfma_f32_32x32x16_bf16 {vr(dst,16)}, {vr(KV[kb],4)}, {vr(QF+4*q,4)}, {c}")
def pv(q, kb, s, src):
    a(f"v_smfmac_f32_32x32x32_bf16 {vr(OA+16*q,16)}, {vr(KV[kb]+4+4*s,4)}, {vr(src+8*s,8)}, v{vI}")
def ex(r): a(f"v_exp_f32 v{r}, v{r}")
def q_frags():
    for j in range(4):
        a(f"""s_add_u32 s{sA}, s{sTT}, {j}
s_and_b32 s{sA}, s{sA}, 3
s_lshl_b32 s{sB}, s{sC}, 2
s_add_u32 s{sA}, s{sA}, s{sB}
s_lshl_b32 s{sA}, s{sA}, 10
s_add_u32 s{sA}, s{sA}, {QST}
v_lshl_add_u32 v{vT0}, v{vL}, 4, s{sA}
ds_read_b128 {vr(QF+4*j,4)}, v{vT0}""")
def kv_addr():
    a(f"""s_lshl_b32 s{sA}, s{sHP}, 1
s_add_u32 s{sA}, s{sA}, s{sC}
s_lshl_b32 s{sA}, s{sA}, 17
s_lshl_b32 s{sB}, s{sTT}, 11
s_add_u32 s{sA}, s{sA}, s{sB}
s_add_u32 s{sA}, s{sA}, {KVB}
v_lshl_add_u32 v{vK}, v{vL}, 4, s{sA}
v_and_b32 v{vV}, 15, v{vL}
v_lshl_add_u32 v{vV}, v{vV}, 4, s{sA}
v_lshrrev_b32 v{vT0}, 5, v{vL}
v_lshl_add_u32 v{vV}, v{vT0}, 8, v{vV}
v_mov_b32 v{vI}, 0xdddd
s_lshl_b32 s{sD}, s{sRB}, 13""")
def att_setup():
    q_frags(); kv_addr()
    for b in range(4):
        for j in range(8): a(f"v_mov_b32 v{KV[b]+4+j}, 0x3f803f80")
    for j in range(32): a(f"v_mov_b32 v{OA+j}, 0")
    a("s_waitcnt lgkmcnt(0)")
def att_fill(d):
    def spread(items, lo=0):
        out = [[] for _ in range(8)]; n = len(items)
        for j, x in enumerate(items): out[lo + j*(8-lo)//n].append(x)
        return out
    def mov2(r, val): return f"v_mov_b64 {vr(r,2)}, {val}" if val == 0 else f"v_mov_b32 v{r}, {val}\nv_mov_b32 v{r+1}, {val}"
    one = 0x3f803f80
    if d == 0: return None
    if d == 1: return spread([mov2(r, one) for r in (4,6,8,10,16,18,20,22,28,30)])
    if d == 2:
        it = [mov2(r, one) for r in (32,34,40,42,44,46)]
        n = len(a.lines); kv_addr(); ad = a.lines[n:]; del a.lines[n:]
        return spread(it + ad)
    out = spread([mov2(OA+2*j, 0) for j in range(16)])
    for k in range(1, 8): out[k] += [mov2(96+4*(k-1), 0), mov2(98+4*(k-1), 0)]
    n = len(a.lines); q_frags(); out[7] += a.lines[n:]; del a.lines[n:]
    return out
def attention():
    a(f"""s_lshl_b32 s{sA}, s{sW}, 2
s_add_u32 s{sA}, s{sA}, {FLG}
v_mov_b32 v{vG2}, s{sA}
v_mov_b32 v{vT1}, 1
s_mov_b32 s{sCNT}, 4""")
    a("s_nop 6")
    ffn1_epi(WF)
    if not OPT['hl']: h_store(WF, sC, vT0)
    a(f"""s_lshl_b32 s{sA}, s{sRB}, 2
s_add_u32 s{sA}, s{sA}, s{sTT}
s_lshl_b32 s{sA}, s{sA}, 5
s_lshl_b32 s{sB}, s{sHP}, 1
s_add_u32 s{sA}, s{sA}, s{sB}
s_add_u32 s{sA}, s{sA}, s{sC}
s_lshl_b32 s{sF}, s{sA}, 10
s_add_u32 s{sF}, s{sF}, {OB}""")
    for j in range(60 if OPT['fill'] else 32, 64, 2): a(f"v_mov_b64 {vr(OA+j,2)}, 0")
    for j in range(0, 8, 2): a(f"v_mov_b64 {vr(SY+8+j,2)}, 0")
    a("s_waitcnt lgkmcnt(0)")
    stamp(3)
    a("s_barrier")
    if OPT['aprio']: a("s_setprio 2")
    for b in range(OPT['kvi']): kv_load(b)
    stamp(4)
    a(f"s_waitcnt vmcnt({3*OPT['kvi']-3})")
    if not OPT['hl']: a(f"ds_write_b32 v{vG2}, v{vT1}")
    stamp(5); stamp3(10)
    qk(SX, 0, 0)
    for b in range(OPT['kvi'], 3): kv_load(b)
    if OPT['hl']: h_store(WF, sC, vT0)
    a("s_nop 7\ns_nop 3" if OPT['kvi'] == 3 else "s_nop 4" if OPT['kvi'] == 2 else "")
    a(".p2align 3")
    a.label("L_att")
    for kt in range(4):
        for q in range(4):
            Xr, Yr = (SX, SY) if q % 2 == 0 else (SY, SX)
            ex(Xr); ex(Xr+1)
            pv((q+3) % 4, kt if q else (kt+3) % 4, 1, Yr)
            if q == 0: kv_load((kt+3) % 4)
            for j in range(2, 5): ex(Xr+j)
            if q == 3:
                a("s_waitcnt vmcnt(6)")
                qk(Yr, (kt+1) % 4, 0)
                if kt == 1:
                    a(f"s_cmp_lg_u32 s{sCNT}, 4\ns_cbranch_scc1 L_ap1")
                    if OPT['hl']: a(f"ds_write_b32 v{vG2}, v{vT1}")
                    if OPT['aprio']: a("s_setprio 1")
                    a.label("L_ap1")
            else: qk(Yr, kt, q+1)
            for j in range(5, 10): ex(Xr+j)
            pv(q, kt, 0, Xr)
            if OPT['aprio'] and 4*kt+q == OPT['aprio']:
                a(f"s_cmp_lg_u32 s{sCNT}, 1\ns_cbranch_scc1 L_ap2\ns_setprio 0")
                a.label("L_ap2")
            if q == 3 and kt == 3: a(f"s_sub_u32 s{sCNT}, s{sCNT}, 1\ns_cmp_lg_u32 s{sCNT}, 0")
            for j in range(10, 16): ex(Xr+j)
    a("s_cbranch_scc1 L_att")
    a("s_nop 1")
    pv(3, 3, 1, SY)
    stamp(6)
    for j in range(1, 4):
        a(f"""s_add_u32 s{sA}, s{sTT}, {j}
s_and_b32 s{sA}, s{sA}, 3
s_lshl_b32 s{sB}, s{sC}, 2
s_add_u32 s{sA}, s{sA}, s{sB}
s_mul_i32 s{sA}, s{sA}, 6912
s_add_u32 s{sA}, s{sA}, {2304*(j-1)}
v_lshl_add_u32 v{SX+j}, v{vL}, 4, s{sA}
v_lshl_add_u32 v{SX+4+j}, v{vL}, 2, s{sA}""")
        if j == 3: a("s_nop 3")
    for j in range(1, 4):
        a(f"""ds_write_b128 v{SX+j}, {vr(OA+16*j,4)}
ds_write_b128 v{SX+j}, {vr(OA+16*j+4,4)} offset:1024
ds_write_b32 v{SX+4+j}, v{OA+16*j+8} offset:2048""")
    a(f"""s_mul_i32 s{sA}, s{sW}, 6912
v_lshl_add_u32 v{SX}, v{vL}, 4, s{sA}
v_lshl_add_u32 v{SX+4}, v{vL}, 2, s{sA}
v_and_b32 v{SX+8}, 31, v{vL}
s_lshl_b32 s{sA}, s{sTT}, 7
s_add_u32 s{sA}, s{sA}, {GL}
v_lshl_add_u32 v{SX+8}, v{SX+8}, 2, s{sA}
s_waitcnt lgkmcnt(0)
s_barrier""")
    stamp(7)
    P = OA+16
    for j in range(3):
        a(f"""ds_read_b128 {vr(P+16*j,4)}, v{SX} offset:{2304*j}
ds_read_b128 {vr(P+16*j+4,4)}, v{SX} offset:{2304*j+1024}
ds_read_b32 v{P+16*j+8}, v{SX+4} offset:{2304*j+2048}""")
    vg = SX+9
    a(f"ds_read_b32 v{vg}, v{SX+8}")
    a(f"v_lshlrev_b32 v{SX+10}, 4, v{vL}")
    for j in range(3):
        a(f"s_waitcnt lgkmcnt({7-3*j})")
        for r in range(9): a(f"v_add_f32 v{OA+r}, v{OA+r}, v{P+16*j+r}")
    t = SX+11
    a(f"v_mul_f32 v{t}, 0, v{OA}")
    for r in range(1, 8): a(f"v_fmac_f32 v{t}, 0, v{OA+r}")
    a(f"""v_add_f32 v{t}, v{t}, v{OA+8}
v_cmp_nle_f32 vcc, 0x2b800000, v{t}
v_cmp_nge_f32 s[{sA+1}:{sA+2}], v{t+1}, v{t}""".replace(f"v_cmp_nle", f"v_mov_b32 v{t+1}, 0x53800000\nv_cmp_nle"))
    a(f"s_nop 0\ns_or_b64 vcc, vcc, s[{sA+1}:{sA+2}]")
    a("s_cbranch_vccnz L_fb" if not OPT['forcefb'] else "s_branch L_fb")
    a.label("L_fbdone")
    a(f"v_rcp_f32 v{t}, v{OA+8}\ns_waitcnt lgkmcnt(0)\nv_mul_f32 v{t}, v{t}, v{vg}")
    for r in range(8): a(f"v_mul_f32 v{OA+r}, v{OA+r}, v{t}")
    pack(OA, OA, 4)
    for r in range(4): a(f"v_min_u32 v{OA+r}, -2, v{OA+r}")
    a(f"buffer_store_dwordx4 {vr(OA,4)}, v{SX+10}, {srd(WS)}, s{sF} offen sc1")
    R, Cc, A0, A1, A2, A3, OADR, BV, T = 16, 17, 18, 19, 20, 21, 22, 24, 32
    stamp(8)
    a(f"""v_lshrrev_b32 v{R}, 3, v{vL}
s_lshl_b32 s{sA}, s{sW}, 3
v_add_u32 v{R}, s{sA}, v{R}
v_and_b32 v{Cc}, 7, v{vL}
s_lshr_b32 s{sA}, s{sHP}, 1
s_lshl_b32 s{sA}, s{sA}, 7
v_lshl_add_u32 v{A0}, v{Cc}, 4, s{sA}
buffer_load_dwordx4 {vr(BV,4)}, v{A0}, {srd(B2)}, 0 offen
s_and_b32 s{sB}, s{sHP}, 1
s_lshl_b32 s{sB}, s{sB}, 6
v_add_u32 v{A1}, s{sB}, v{R}
v_lshlrev_b32 v{A2}, 2, v{A1}
v_add_u32 v{A2}, {GL}, v{A2}
ds_read_b32 v{vg}, v{A2}
s_lshl_b32 s{sB}, s{sRB}, 7
v_add_u32 v{A1}, s{sB}, v{A1}
v_lshl_add_u32 v{OADR}, v{A1}, 10, v{A0}
v_lshlrev_b32 v{A0}, 1, v{Cc}
v_and_b32 v{A1}, 15, v{R}
v_xor_b32 v{A0}, v{A0}, v{A1}
v_lshlrev_b32 v{A0}, 4, v{A0}
v_lshl_add_u32 v{A0}, v{R}, 8, v{A0}
v_add_u32 v{A0}, {FP[0]}, v{A0}
v_xor_b32 v{A1}, 16, v{A0}
s_waitcnt vmcnt(0) lgkmcnt(0)
v_sub_f32 v{vg}, 1.0, v{vg}""")
    for q in range(4):
        a(f"v_lshlrev_b32 v{T+2*q}, 16, v{BV+q}\nv_and_b32 v{T+2*q+1}, 0xffff0000, v{BV+q}")
    for r in range(8): a(f"v_mul_f32 v{T+r}, v{T+r}, v{vg}")
    a("s_barrier")
    stamp(9)
    for p in range(4):
        x0, x1, o = A0, A1, 16384*p
        a(f"ds_read_b128 {vr(64+8*p,4)}, v{x0} offset:{o}\nds_read_b128 {vr(68+8*p,4)}, v{x1} offset:{o}")
    for p in range(4):
        a(f"s_waitcnt lgkmcnt({6-2*p})")
        for r in range(8): a(f"v_add_f32 v{T+r}, v{T+r}, v{64+8*p+r}")
    pack(T, T, 4)
    a(f"buffer_store_dwordx4 {vr(T,4)}, v{OADR}, {srd(OUT)}, 0 offen" + ["", " sc1", " nt", " sc0 sc1", " sc1 nt"][OPT['ost']])
    stamp(10)
    a("s_branch L_end")
    fallback()

def fallback():
    M, NC = SY, 96
    a.label("L_fb")
    a(f"""s_waitcnt vmcnt(0) lgkmcnt(0)
s_lshl_b32 s{sA}, s{sTT}, 11
v_subrev_u32 v{vK}, s{sA}, v{vK}
v_subrev_u32 v{vV}, s{sA}, v{vV}
v_mov_b32 v{M}, 0xff800000
s_mov_b32 s{sD}, 0""")
    a.label("L_fb1")
    a(f"buffer_load_dwordx4 {vr(KV[0],4)}, v{vK}, {srd(WS)}, s{sD} offen sc1\ns_waitcnt vmcnt(0)")
    qk(NC, 0, 0)
    a("s_nop 7\ns_nop 3")
    for j in range(8): a(f"v_max3_f32 v{M}, v{NC+2*j}, v{NC+2*j+1}, v{M}")
    a(f"s_add_u32 s{sD}, s{sD}, 2048\ns_cmp_lg_u32 s{sD}, 131072\ns_cbranch_scc1 L_fb1")
    a(f"""v_mov_b32 v{M+1}, v{M}
s_nop 1
v_permlane32_swap_b32 v{M}, v{M+1}
s_nop 1
v_max_f32 v{M}, v{M}, v{M+1}""")
    for j in range(16): a(f"v_sub_f32 v{112+j}, 0, v{M}\nv_mov_b32 v{OA+j}, 0")
    a(f"s_mov_b32 s{sD}, 0")
    a.label("L_fb2")
    a(f"""buffer_load_dwordx4 {vr(KV[0],4)}, v{vK}, {srd(WS)}, s{sD} offen sc1
s_mov_b64 exec, {sr(sVM,2)}
buffer_load_dwordx4 {vr(KV[0]+4,4)}, v{vV}, {srd(WS)}, s{sD} offen offset:1024 sc1
buffer_load_dwordx4 {vr(KV[0]+8,4)}, v{vV}, {srd(WS)}, s{sD} offen offset:1536 sc1
s_mov_b64 exec, -1
s_waitcnt vmcnt(0)""")
    qk(NC, 0, 0, vr(112,16))
    a("s_nop 7\ns_nop 3")
    for j in range(16): ex(NC+j)
    a("s_nop 1")
    pv(0, 0, 0, NC); pv(0, 0, 1, NC)
    a(f"s_add_u32 s{sD}, s{sD}, 2048\ns_cmp_lg_u32 s{sD}, 131072\ns_cbranch_scc1 L_fb2")
    a("s_nop 7\ns_nop 3\ns_branch L_fbdone")

def role_q_head():
    w_addr()
    a(f"""s_lshl_b32 s{sLD}, s{sTT}, 10
s_lshl_b32 s{sD}, s{sW}, 10
s_mov_b32 s{sC}, 2""")
    a(f"""v_lshlrev_b32 v1, 2, v{vL}
v_add_u32 v2, {FLG}, v1
v_mov_b32 v3, 0
s_lshl_b32 s{sA}, s{sST}, 7
v_lshl_add_u32 v4, v{vL}, 4, s{sA}
v_and_b32 v4, 1023, v4
s_mul_i32 s{sA}, s{sHP}, 192
v_add_u32 v5, s{sA}, v1
v_lshlrev_b32 v6, 8, v{vL}
s_waitcnt lgkmcnt(0)""")
    stamp2(1)
    a(f"""s_cmp_lg_u32 s{sW}, 11
s_cbranch_scc1 L_q1
s_cmp_lg_u32 s2, 0
s_cbranch_scc1 L_q0
s_mov_b64 exec, 0xffffffffffff
buffer_store_dword v3, v6, {srd(WS)}, 0 offen sc1
s_mov_b64 exec, -1""".replace("s_mov_b64 exec, 0xffffffffffff", "s_mov_b32 exec_hi, 0"))
    a.label("L_q0")
    a(f"""ds_write_b32 v2, v3
s_mov_b32 m0, {GWL}
s_nop 0
buffer_load_dwordx4 v4, {srd(GW)}, 0 offen lds
s_mov_b32 m0, {B1L}
s_nop 0
buffer_load_dword v5, {srd(B1)}, 0 offen lds""")
    a.label("L_q1")
    for i in range(NS-1):
        if i and OPT['ib'] >= i: a('s_barrier')
        load_wq(i)
    if OPT['qp']: a('s_branch L_roleQ')
def role_q():
    a.label("L_roleQ")
    if not OPT['qp']: role_q_head()
    deferred()
    w1_addr(vG2)
    stamp2(2)
    a(f"s_mov_b32 s{sA}, {16384+8192}")
    wa64(1, 2, sA)
    if OPT['gdot']:
        a(f"v_lshrrev_b32 v{vT0}, 5, v{vL}\nv_lshlrev_b32 v{vT0}, 4, v{vT0}\nv_add_u32 v{vT0}, {GWL}, v{vT0}\nv_mov_b32 v{vT1}, 0\nv_mov_b32 v{vG1}, 0")
    vm = VM(); bx = Base(vXA); bw = Base(vWA, 16384)
    for i in range(NS-1): vm.add(('s', i))
    deferred_wait()
    for i in range(8):
        vm.wait(('s', i))
        if i == 0:
            a(f"""s_cmp_lg_u32 s{sW}, 11
s_cbranch_scc1 L_q2
s_cmp_lg_u32 s2, 0
s_cbranch_scc1 L_q2
v_mov_b32 v4, 1
s_mov_b64 exec, 1
buffer_store_dword v4, v3, {srd(DBG)}, 0 offen sc1
s_mov_b64 exec, -1""")
            a.label("L_q2")
        if i == 0: stamp2(3)
        a("s_barrier")
        if i in (0,1,2,4,7): stamp2({0:4,1:6,2:7,4:8,7:9}[i])
        if i == 0: stamp(1)
        ld = step_loads(i, vm, load_wq, 1, vG2)
        if i == OPT['clr']:
            assert not OPT['gdot'] and i < 6
            ld.append(f"""s_lshl_b32 s{sA}, s{sRB}, 2
s_add_u32 s{sA}, s{sA}, s{sTT}
s_lshl_b32 s{sA}, s{sA}, 4
s_add_u32 s{sA}, s{sA}, s{sHP}
s_lshl_b32 s{sA}, s{sA}, 11
s_add_u32 s{sA}, s{sA}, {OB}
v_lshlrev_b32 v116, 4, v{vL}
v_mov_b64 v[112:113], -1
v_mov_b64 v[114:115], -1
buffer_store_dwordx4 v[112:115], v116, {srd(WS)}, s{sA} offen sc1
buffer_store_dwordx4 v[112:115], v116, {srd(WS)}, s{sA} offen offset:1024 sc1""")
            vm.add('clr', 2)
        qkv_step(i, 'Q', bx, bw, ld)
        if i in (0,7): stamp2(5 if i == 0 else 10)
    stamp(2); stamp3(1)
    if OPT['qb']:
        assert OPT['sg0'] or OPT['sig'] > 0
        vm.wait(('w', 0)); a("s_barrier")
    if OPT['gdot']: a(f"s_nop 2\nv_add_f32 v{vG1}, v{vG1}, v{vT1}")
    b1_init(sC)
    if OPT['gdot']:
        a(f"v_mov_b32 v{vG0}, v{vG1}\ns_nop 1\nv_permlane32_swap_b32 v{vG0}, v{vG1}\ns_nop 1\nv_add_f32 v{vG1}, v{vG0}, v{vG1}")
        sigmoid(vG1)
    a(f"""s_lshl_b32 s{sA}, s{sTT}, 10
s_add_u32 s{sA}, s{sA}, {QST}
v_lshl_add_u32 v{vXA}, v{vL}, 4, s{sA}
s_mov_b32 s{sA}, {QSC}
s_nop 1""")
    for j in range(16): a(f"v_mul_f32 v{ACC+j}, s{sA}, v{ACC+j}")
    pack(WF, ACC, 8)
    a(f"ds_write_b128 v{vXA}, {vr(WF,4)}\nds_write_b128 v{vXA}, {vr(WF+4,4)} offset:4096")
    a(f"s_movk_i32 s{sA}, 128")
    wa64(vT0, vT1, sA, 192)
    bw = Base(vWA)
    b1_fin()
    for d in range(4):
        ffn1_pair(d, bw, d_phase(d, vm, vG2, False, None))
    gemm()

GA = 0
HF = [64, 72, 80, 88]
WR = 96
vH, vWa, vWb, vR0, vR1 = 160, 161, 162, 163, 164
def sigmoid(r):
    a(f"""v_mul_f32 v{r}, 0xbfb8aa3b, v{r}
v_exp_f32 v{r}, v{r}
v_and_b32 v{vT0}, 31, v{vL}
v_add_f32 v{r}, 1.0, v{r}
v_rcp_f32 v{r}, v{r}
s_lshl_b32 s{sA}, s{sTT}, 7
s_add_u32 s{sA}, s{sA}, {GL}
v_lshl_add_u32 v{vT0}, v{vT0}, 2, s{sA}
ds_write_b32 v{vT0}, v{r}""")
def gate():
    a(f"v_lshrrev_b32 v{vT0}, 5, v{vL}\nv_lshlrev_b32 v{vT0}, 4, v{vT0}\nv_add_u32 v{vT0}, {GWL}, v{vT0}")
    G4 = [152, 156, 144, 148]
    for k in range(4): a(f"ds_read_b128 {vr(G4[k],4)}, v{vT0} offset:{32*k}")
    for k in range(32):
        a(f"s_waitcnt lgkmcnt({min(3,31-k)})")
        a(f"v_mfma_f32_32x32x16_bf16 {vr(ACC,16)}, {vr(G4[k%4],4)}, {vr(4*k,4)}, {'0' if k==0 else vr(ACC,16)}")
        if k < 28: a(f"ds_read_b128 {vr(G4[k%4],4)}, v{vT0} offset:{32*(k+4)}")
def s1_pre():
    a(f"""s_cmp_lg_u32 s{sW}, 8
s_cbranch_scc1 L_e0
s_lshr_b32 s{sD}, s{sHP}, 1
s_lshl_b32 s{sD}, s{sD}, 8
v_mov_b32 v{vR1}, 0
s_mov_b64 exec, 1
buffer_load_dword v{vR0}, v{vR1}, {srd(WS)}, s{sD} offen sc1
s_mov_b64 exec, -1""")
    a.label("L_e0")
def s1_wait():
    a(f"s_cmp_lg_u32 s{sW}, 8\ns_cbranch_scc1 L_e")
    stamp3(10)
    a(f"s_mov_b64 exec, 1\ns_waitcnt vmcnt(0)\nv_cmp_eq_u32 vcc, 32, v{vR0}\ns_mov_b64 exec, -1\ns_cbranch_vccnz L_e")
    poll(sD, vT0, vT1, 32)
    a.label("L_e")
    stamp(3)
    a("s_barrier")
    a(f"s_setprio {OPT['prio']}")
def gemm():
    s1_pre()
    a(f"""v_lshrrev_b32 v{vT0}, 3, v{vL}
v_lshlrev_b32 v{vT0}, 10, v{vT0}
v_bfe_u32 v{vT1}, v{vL}, 4, 1
v_lshlrev_b32 v{vT1}, 2, v{vT1}
v_and_b32 v{vWa}, 7, v{vL}
v_xor_b32 v{vWa}, v{vWa}, v{vT1}
v_lshl_add_u32 v{vWa}, v{vWa}, 4, v{vT0}
s_lshr_b32 s{sA}, s{sHP}, 1
s_lshl_b32 s{sA}, s{sA}, 7
v_add_u32 v{vWa}, s{sA}, v{vWa}
v_add_u32 v{vWb}, 8192, v{vWa}
s_nop 0""")
    ffn1_epi(WF)
    s1_wait()
    h_store(WF, sC, vT0)
    if not OPT['gdot'] and OPT['gpre'] != 2: gate()
    if not OPT['gdot'] and OPT['gpre'] != 2:
        a("s_nop 7\ns_nop 3"); sigmoid(ACC)
    a(f"""s_lshl_b32 s{sA}, s{sW}, 2
s_add_u32 s{sA}, s{sA}, {FLG}
v_mov_b32 v{vT0}, s{sA}
v_mov_b32 v{vT1}, 1
s_waitcnt vmcnt(0)
ds_write_b32 v{vT0}, v{vT1}""")
    a(f"""v_lshrrev_b32 v{vT0}, 5, v{vL}
v_bfe_u32 v{vT1}, v{vL}, 2, 2
v_lshl_add_u32 v{vT0}, v{vT0}, 2, v{vT1}
v_lshlrev_b32 v{vT0}, 7, v{vT0}
v_bfe_u32 v{vT1}, v{vL}, 4, 1
v_lshl_add_u32 v{vT0}, v{vT1}, 5, v{vT0}
v_and_b32 v{vT1}, 3, v{vL}
v_lshl_add_u32 v{vT0}, v{vT1}, 3, v{vT0}
v_bfe_u32 v{vT1}, v{vL}, 3, 1
v_lshl_add_u32 v{vT0}, v{vT1}, 6, v{vT0}
s_lshl_b32 s{sLD}, s{sTT}, 13
s_add_u32 s{sLD}, s{sLD}, {RING}
v_add_u32 v{vR0}, s{sLD}, v{vT0}
v_xor_b32 v{vR1}, 64, v{vR0}""")
    if OPT['gdot'] or OPT['gpre'] != 2:
        for j in range(0, 64, 2): a(f"v_mov_b64 {vr(GA+j,2)}, 0")
    a(f"""s_mul_i32 s{sD}, s{sTT}, 22
s_cmp_eq_u32 s{sTT}, 3
s_subb_u32 s{sD}, s{sD}, 0
s_lshr_b32 s{sA}, s{sTT}, 1
s_sub_u32 s{sCNT}, 22, s{sA}
s_add_u32 s{sE}, s{sD}, s{sCNT}
s_sub_u32 s{sE}, s{sE}, 1
s_lshl_b32 s{sA}, s{sRB}, 2
s_and_b32 s{sB}, s{sHP}, 1
s_lshl_b32 s{sB}, s{sB}, 1
s_add_u32 s{sF}, s{sA}, s{sB}
s_mul_i32 s{sA}, s{sF}, {86*1024}
s_add_u32 s{sA}, s{sA}, {HB}
v_lshl_add_u32 v{vH}, v{vL}, 4, s{sA}""")
    a(f"s_lshl_b32 s{sC}, s{sRB}, 8\ns_add_u32 s{sC}, s{sC}, 4096")
    a(f"s_cmp_lg_u32 s{sW}, 8\ns_cbranch_scc1 L_s2done")
    a(f"v_lshlrev_b32 v{vT0}, 2, v{vL}\nv_add_u32 v{vT0}, {FLG}, v{vT0}\ns_mov_b64 exec, 0xfff")
    a.label("L_flg")
    a(f"""ds_read_b32 v{vT1}, v{vT0}
s_waitcnt lgkmcnt(0)
v_cmp_ne_u32 vcc, 1, v{vT1}
s_nop 0
s_cbranch_vccz L_flgok""")
    spin("L_flg", "L_flgok", 4)
    a.label("L_flgok")
    a("s_mov_b64 exec, -1")
    signal(sC, vT0, vT1)
    a.label("L_s2done")
    a(f"s_setprio {OPT['prio2']}")
    a(f"s_lshl_b32 s{sA}, s{sTT}, 17\ns_lshl_b32 s{sB}, s{sTT}, 14\ns_add_u32 s{sB}, s{sB}, {WOL}")
    for n in range(8):
        a(f"""s_add_u32 m0, s{sB}, {2048*n}
s_nop 0
buffer_load_dwordx4 v{vWa}, {srd(WO)}, s{sA} offen lds
s_add_u32 m0, s{sB}, {2048*n+1024}
s_nop 0
buffer_load_dwordx4 v{vWb}, {srd(WO)}, s{sA} offen lds
s_add_u32 s{sA}, s{sA}, 16384""")
    if not OPT['gdot'] and OPT['gpre'] == 2:
        gate()
        for j in range(64): a(f"v_mov_b32 v{GA+j}, 0")
        sigmoid(ACC)
    stamp(4)
    poll(sC, vT0, vT1)
    stamp(5)
    def issue(st):
        a(f"""s_lshl_b32 s{sA}, s{sD}, 14
s_add_u32 m0, s{sLD}, {2048*st}
s_lshl_b32 s{sB}, s{sD}, 10
buffer_load_dwordx4 v{vWa}, {srd(W2)}, s{sA} offen lds
s_add_u32 m0, s{sLD}, {2048*st+1024}
buffer_load_dwordx4 {vr(HF[st],4)}, v{vH}, {srd(WS)}, s{sB} offen sc1
buffer_load_dwordx4 v{vWb}, {srd(W2)}, s{sA} offen lds
s_add_u32 s{sB}, s{sB}, {86*1024}
s_add_u32 s{sD}, s{sD}, 1
buffer_load_dwordx4 {vr(HF[st]+4,4)}, v{vH}, {srd(WS)}, s{sB} offen sc1
s_min_u32 s{sD}, s{sD}, s{sE}""")
    def wread(r, o):
        a(f"""ds_read_b64_tr_b16 {vr(r,2)}, v{vR0} offset:{o}
ds_read_b64_tr_b16 {vr(r+2,2)}, v{vR0} offset:{o+1024}
ds_read_b64_tr_b16 {vr(r+4,2)}, v{vR1} offset:{o}
ds_read_b64_tr_b16 {vr(r+6,2)}, v{vR1} offset:{o+1024}""")
    def mm(tt, ct, w, h):
        g = vr(GA+32*tt+16*ct, 16)
        a(f"v_mfma_f32_32x32x16_bf16 {g}, {vr(w+4*ct,4)}, {vr(h+4*tt,4)}, {g}")
    if OPT['nof2']: a("s_branch L_f2done")
    for st in range(4): issue(st)
    a.label("L_f2")
    for st in range(4):
        a("s_waitcnt vmcnt(12)")
        if OPT['f2s']:
            o = 2048*st
            a(f"ds_read_b64_tr_b16 {vr(WR,2)}, v{vR0} offset:{o}\nds_read_b64_tr_b16 {vr(WR+2,2)}, v{vR0} offset:{o+1024}\ns_waitcnt lgkmcnt(0)")
            mm(0, 0, WR, HF[st])
            a(f"ds_read_b64_tr_b16 {vr(WR+4,2)}, v{vR1} offset:{o}\ns_waitcnt lgkmcnt(0)")
            mm(1, 0, WR, HF[st])
            a(f"ds_read_b64_tr_b16 {vr(WR+6,2)}, v{vR1} offset:{o+1024}\ns_waitcnt lgkmcnt(0)")
            mm(0, 1, WR, HF[st])
            a(f"s_sub_u32 s{sCNT}, s{sCNT}, 1\ns_cmp_eq_u32 s{sCNT}, 0\ns_cbranch_scc1 L_f2x{st}")
            g = capture(issue, st)
            a(g[0]); a(g[1]); a(g[2])
            mm(1, 1, WR, HF[st])
            for x in g[3:]: a(x)
            continue
        wread(WR, 2048*st)
        a("s_waitcnt lgkmcnt(2)")
        mm(0, 0, WR, HF[st]); mm(1, 0, WR, HF[st])
        a("s_waitcnt lgkmcnt(0)")
        mm(0, 1, WR, HF[st]); mm(1, 1, WR, HF[st])
        a(f"s_sub_u32 s{sCNT}, s{sCNT}, 1\ns_cmp_eq_u32 s{sCNT}, 0\ns_cbranch_scc1 L_f2done")
        issue(st)
    a("s_branch L_f2")
    if OPT['f2s']:
        for st in range(4):
            a.label(f"L_f2x{st}")
            mm(1, 1, WR, HF[st])
            if st < 3: a("s_branch L_f2done")
    a.label("L_f2done")
    stamp(6)
    a(f"""s_lshl_b32 s{sA}, s{sTT}, 14
s_add_u32 s{sA}, s{sA}, {WOL}
s_sub_u32 s{sA}, s{sA}, s{sLD}
v_add_u32 v{vR0}, s{sA}, v{vR0}
v_add_u32 v{vR1}, s{sA}, v{vR1}
s_lshl_b32 s{sA}, s{sF}, 15
s_lshl_b32 s{sB}, s{sTT}, 13
s_add_u32 s{sA}, s{sA}, s{sB}
s_add_u32 s{sA}, s{sA}, {OB}
s_waitcnt vmcnt(0)
v_lshl_add_u32 v{vH}, v{vL}, 4, s{sA}
v_and_b32 v65, 7, v{vL}
v_lshl_add_u32 v65, v65, 10, s{sA}
v_bfe_u32 v{vT0}, v{vL}, 3, 1
v_lshl_add_u32 v65, v{vT0}, 15, v65
v_and_b32 v{vT0}, 31, v{vL}
s_and_b32 s{sB}, s{sHP}, 1
s_lshl_b32 s{sB}, s{sB}, 8
s_add_u32 s{sB}, s{sB}, {GL}
v_lshl_add_u32 v{vWb}, v{vT0}, 2, s{sB}
v_lshrrev_b32 v{vT1}, 5, v{vL}
v_and_b32 v{vWa}, 15, v{vL}
v_xor_b32 v{vWa}, v{vWa}, v{vT1}
v_lshlrev_b32 v{vWa}, 4, v{vWa}
v_lshl_add_u32 v{vWa}, v{vT0}, 8, v{vWa}
s_lshl_b32 s{sA}, s{sTT}, 14
s_add_u32 s{sA}, s{sA}, {FP[0]}
v_add_u32 v{vWa}, s{sA}, v{vWa}
s_waitcnt vmcnt(0)""")
    W8 = 128
    if OPT['inc']: a(f"v_mov_b32 v{vL}, v65")
    else:
        for k in range(4): wread(W8+8*k, 2048*k)
    a(f"""s_mov_b32 s{sB}, 4096
s_mov_b32 s{sC}, 32768
s_mov_b32 s{sD}, {32768+4096}
s_mov_b32 s{sE}, {255 if OPT['inc'] else 0}
s_barrier""")
    stamp(7)
    OF = 64
    def oload(k):
        a(f"buffer_load_dwordx4 {vr(OF+8*k,4)}, v{vH}, {srd(WS)}, {'0' if k < 4 else 's%d'%sB} offen offset:{1024*(k%4)} sc1")
        a(f"buffer_load_dwordx4 {vr(OF+8*k+4,4)}, v{vH}, {srd(WS)}, s{sC if k < 4 else sD} offen offset:{1024*(k%4)} sc1")
    def ocheck(k):
        r = OF+8*k; t1 = vWb if OPT['inc'] else vT1
        a(f"""v_max3_u32 v{vT0}, v{r}, v{r+1}, v{r+2}
v_max3_u32 v{t1}, v{r+3}, v{r+4}, v{r+5}
v_max3_u32 v{vT0}, v{r+6}, v{r+7}, v{vT0}
v_max_u32 v{vT0}, v{vT0}, v{t1}
v_cmp_eq_u32 vcc, -1, v{vT0}""")
    def omm(k):
        w = W8+8*(k % 4)
        mm(0, 0, w, OF+8*k); mm(1, 0, w, OF+8*k); mm(0, 1, w, OF+8*k); mm(1, 1, w, OF+8*k)
    if OPT['prio3'] >= 0: a(f"s_setprio {OPT['prio3']}")
    pd, pa = (vT1, vL) if OPT['inc'] else (OF, OF+1)
    pollc = f"s_mov_b64 exec, 0xffff\nbuffer_load_dword v{pd}, v{pa}, {srd(WS)}, 0 offen sc1\ns_mov_b64 exec, -1"
    a(f"""{pollc}
ds_read_b32 v{vT0}, v{vWb}
ds_read_b32 v{vWb}, v{vWb} offset:128
s_waitcnt lgkmcnt(0)
v_sub_f32 v{vT0}, 1.0, v{vT0}
v_sub_f32 v{vWb}, 1.0, v{vWb}""")
    for j in range(0, 64, 2):
        g = vT0 if j < 32 else vWb
        a(f"v_pk_mul_f32 {vr(GA+j,2)}, {vr(GA+j,2)}, {vr(g,2)} op_sel_hi:[1,0]")
    if OPT['inc']:
        a.label("L_opoll")
        a(f"""s_waitcnt vmcnt(0)
v_cmp_eq_u32 vcc, -1, v{pd}
s_nop 0
s_lshr_b32 s{sA}, vcc_lo, 8
s_or_b32 s{sA}, s{sA}, vcc_lo
s_andn2_b32 s{sA}, s{sE}, s{sA}
s_cbranch_scc1 L_ordy""")
        if OPT['bound']: a("s_add_u32 s63, s63, 1\ns_cmp_gt_u32 s63, 100000\ns_cbranch_scc1 L_odone")
        if OPT['slp']: a(f"s_sleep {OPT['slp']}")
        a(pollc + "\ns_branch L_opoll")
        a.label("L_ordy")
        if OPT['bound']: a("s_add_u32 s63, s63, 1\ns_cmp_gt_u32 s63, 100000\ns_cbranch_scc1 L_odone")
        stamp(8)
        for k in range(8):
            a(f"s_bitcmp1_b32 s{sA}, {k}\ns_cbranch_scc0 L_oi{k}")
            oload(k)
            a.label(f"L_oi{k}")
        a(f"s_cmp_eq_u32 s{sA}, s{sE}\ns_cbranch_scc1 L_onp")
        a(pollc)
        a.label("L_onp")
        for k in range(4):
            a(f"s_bitcmp1_b32 s{sA}, {k}\ns_cbranch_scc0 L_ow{k}")
            wread(W8+8*k, 2048*k)
            a(f"s_branch L_ox{k}")
            a.label(f"L_ow{k}")
            wread(W8+8*k, 2048*(k+4))
            a.label(f"L_ox{k}")
        a("s_waitcnt vmcnt(0)")
        for k in range(8):
            a(f"s_bitcmp1_b32 s{sA}, {k}\ns_cbranch_scc0 L_oq{k}")
            ocheck(k)
            a(f"s_waitcnt lgkmcnt(0)\ns_cbranch_vccnz L_oy{k}\ns_bitset0_b32 s{sE}, {k}")
            omm(k)
            a.label(f"L_oy{k}")
            if k < 4:
                a(f"s_bitcmp1_b32 s{sA}, {k+4}\ns_cbranch_scc0 L_oq{k}")
                wread(W8+8*k, 2048*(k+4))
            a.label(f"L_oq{k}")
        a(f"s_cmp_lg_u32 s{sE}, 0\ns_cbranch_scc1 L_opoll")
    else:
        if OPT['npl']:
            NP = OPT['npl']; pr = [OF, OF+2, OF+3, OF+4][:NP]
            a("s_mov_b64 exec, 0xffff")
            for i in range(1, NP):
                if i > 1: a(f"s_sleep {OPT['slp']}")
                a(f"buffer_load_dword v{pr[i]}, v{OF+1}, {srd(WS)}, 0 offen sc1")
            a.label("L_opoll")
            for i in range(NP):
                a(f"s_waitcnt vmcnt({NP-1})\nv_cmp_eq_u32 vcc, -1, v{pr[i]}\ns_nop 0\ns_and_b64 exec, exec, vcc\ns_cbranch_execz L_ordy")
                if OPT['bound']: a("s_add_u32 s63, s63, 1\ns_cmp_gt_u32 s63, 100000\ns_cbranch_scc1 L_ordy")
                if OPT['slp']: a(f"s_sleep {OPT['slp']}")
                a(f"buffer_load_dword v{pr[i]}, v{OF+1}, {srd(WS)}, 0 offen sc1")
            a("s_branch L_opoll")
        else:
            a("s_mov_b64 exec, 0xffff")
            a.label("L_opoll")
            a(f"s_waitcnt vmcnt(0)\nv_cmp_eq_u32 vcc, -1, v{OF}\ns_nop 0\ns_cbranch_vccz L_ordy")
            if OPT['bound']: a("s_add_u32 s63, s63, 1\ns_cmp_gt_u32 s63, 100000\ns_cbranch_scc1 L_ordy")
            if OPT['slp']: a(f"s_sleep {OPT['slp']}")
            a(f"buffer_load_dword v{OF}, v{OF+1}, {srd(WS)}, 0 offen sc1\ns_branch L_opoll")
        a.label("L_ordy")
        a("s_mov_b64 exec, -1")
        stamp(8)
        for k in range(8): oload(k)
        for k in range(8):
            a(f"s_waitcnt vmcnt({14-2*k})" + (f" lgkmcnt({min(12,4*(7-k))})" if k >= 4 else ""))
            ocheck(k)
            a(f"s_bitset1_b32 s{sE}, {k}\ns_cbranch_vccnz L_op{k}\ns_bitset0_b32 s{sE}, {k}")
            omm(k)
            a.label(f"L_op{k}")
            if k < 4: wread(W8+8*k, 2048*(k+4))
        a.label("L_orep")
        a(f"s_cmp_eq_u32 s{sE}, 0\ns_cbranch_scc1 L_odone")
        if OPT['bound']: a("s_add_u32 s63, s63, 1\ns_cmp_gt_u32 s63, 100000\ns_cbranch_scc1 L_odone")
        if OPT['slp']: a(f"s_sleep {OPT['slp']}")
        for k in range(8):
            a(f"s_bitcmp1_b32 s{sE}, {k}\ns_cbranch_scc0 L_oi{k}")
            oload(k)
            a.label(f"L_oi{k}")
        a("s_waitcnt vmcnt(0)")
        for k in range(8):
            a(f"s_bitcmp1_b32 s{sE}, {k}\ns_cbranch_scc0 L_oq{k}")
            wread(W8+8*(k % 4), 2048*k)
            ocheck(k)
            a(f"s_nop 0\ns_cbranch_vccnz L_oq{k}\ns_bitset0_b32 s{sE}, {k}\ns_waitcnt lgkmcnt(0)")
            omm(k)
            a.label(f"L_oq{k}")
        a("s_branch L_orep")
    a.label("L_odone")
    stamp(9)
    for ct in range(2):
        for q in range(4):
            a(f"v_xor_b32 v{64+4*ct+q}, {(8*ct+2*q)*16}, v{vWa}")
    a("s_nop 1")
    for ct in range(2):
        for tt in range(2):
            for q in range(4):
                a(f"ds_write_b128 v{64+4*ct+q}, {vr(GA+32*tt+16*ct+4*q,4)} offset:{8192*tt}")
    a("s_waitcnt lgkmcnt(0)\ns_barrier")
    stamp(10)

def epilogue():
    a.label("L_end")
    if OPT['prof']:
        a(f"s_memtime {sr(sPR+22,2)}\ns_memrealtime {sr(sPR+26,2)}\ns_waitcnt lgkmcnt(0)")
        for i in range(14): a(f"v_writelane_b32 v1, s{sPR+2*i}, {i}")
        a(f"""s_mul_i32 s{sA}, s2, 12
s_add_u32 s{sA}, s{sA}, s{sW}
s_lshl_b32 s{sA}, s{sA}, 6
s_add_u32 s{sA}, s{sA}, {PRB}
v_mbcnt_lo_u32_b32 v2, -1, 0
v_lshlrev_b32 v2, 2, v2
s_mov_b64 exec, 0x3fff
buffer_store_dword v1, v2, {srd(WS)}, s{sA} offen""")
    a.label("L_exit")
    a("s_endpgm")

prologue(); role_kv(); role_q(); epilogue()
probs = check(a.lines)
for p in probs: print(p, file=sys.stderr)
hdr = f"""; fused gate / QKV / attention / FFN / output kernel (generated by gen/gen.py)
; @launch grid=(256,1,1) block=(768,1,1) lds=163840
.amdgcn_target "amdgcn-amd-amdhsa--gfx950"
.text
.globl {NAME}_kernel
.p2align 8
.type {NAME}_kernel,@function
{NAME}_kernel:
"""
ftr = f""".section .rodata,"a"
.p2align 6
.amdhsa_kernel {NAME}_kernel
  .amdhsa_next_free_vgpr 168
  .amdhsa_next_free_sgpr 102
  .amdhsa_accum_offset 168
  .amdhsa_group_segment_fixed_size 0
  .amdhsa_kernarg_size 96
  .amdhsa_user_sgpr_count 2
  .amdhsa_user_sgpr_kernarg_segment_ptr 1
  .amdhsa_system_sgpr_workgroup_id_x 1
.end_amdhsa_kernel
"""
open(sys.argv[1], "w").write(hdr + a.text() + ftr)
```
